```python
import torch

def _softmax(x, axis=-1):
    return torch.softmax(x, dim=axis)
def _gelu(x):
    return torch.nn.functional.gelu(x, approximate="tanh")
def _silu(x):
    return torch.nn.functional.silu(x)
def _sigmoid(x):
    return torch.sigmoid(x)
def _layernorm(x, axis=-1, eps=1e-5):
    m = x.mean(dim=axis, keepdim=True)
    v = x.var(dim=axis, keepdim=True, unbiased=False)
    return (x - m) / torch.sqrt(v + eps)
def _scatter_add(tgt, idx, src, axis=0):
    return tgt.clone().index_add_(axis, idx, src)
def _segment_sum(src, seg, n):
    out = torch.zeros((n,) + src.shape[1:], dtype=src.dtype)
    return out.index_add_(0, seg, src)
def _pad(x, pw):
    flat = tuple(v for pair in reversed(pw) for v in pair)
    return torch.nn.functional.pad(x, flat)

kernel_name = 'gated_mix__sliding_local_dilated__compressed_kv_cla__prompt'

def setup_inputs():

    _w = (lambda a: (lambda t: t.to(torch.bfloat16) if t.is_floating_point() else t)(torch.as_tensor(a)))
    def _A_setup():
        B, S, D = 1, 2048, 576
        return {
            "x": _w((lambda *s: torch.randn(*s, dtype=torch.bfloat16) * 0.05)(B, S, D)),
            "wqkv": _w((lambda *s: torch.randn(*s, dtype=torch.bfloat16) * 1.6)(D, 3 * D)),
            "wo": _w((lambda *s: torch.randn(*s, dtype=torch.bfloat16) * 0.05)(D, D)),
        }
    _A_in = _A_setup()

    def _B_setup():
        B, H, Sq, Sk, D, M = 1, 32, 2048, 2048, 128, 576
        Dc = 4 * D
        return {
            "x": _w((lambda *s: torch.randn(*s, dtype=torch.bfloat16) * 0.05)(B, Sq, M)),
            "c_kv": _w((lambda *s: torch.randn(*s, dtype=torch.bfloat16) * 1.6)(B, Sk, Dc)),
            "w_q": _w((lambda *s: torch.randn(*s, dtype=torch.bfloat16) * 6.4)(M, H, D) * (M ** -0.5)),
            "w_uk": _w((lambda *s: torch.randn(*s, dtype=torch.bfloat16) * 6.4)(Dc, H, D) * (Dc ** -0.5)),
            "w_uv": _w((lambda *s: torch.randn(*s, dtype=torch.bfloat16) * 1.6)(Dc, H, D) * (Dc ** -0.5)),
            "w_o": _w((lambda *s: torch.randn(*s, dtype=torch.bfloat16) * 1.6)(H, D, M) * ((H * D) ** -0.5)),
        }
    _B_in = _B_setup()

    return {
        "A_x": _A_in["x"],
        "A_wqkv": _A_in["wqkv"],
        "A_wo": _A_in["wo"],
        "B_x": _B_in["x"],
        "B_c_kv": _B_in["c_kv"],
        "B_w_q": _B_in["w_q"],
        "B_w_uk": _B_in["w_uk"],
        "B_w_uv": _B_in["w_uv"],
        "B_w_o": _B_in["w_o"],
        "gate_w": _w((lambda *s: torch.randn(*s, dtype=torch.bfloat16) * 0.05)(576) * 16.0),
    }

def reference(A_x, A_wqkv, A_wo, B_x, B_c_kv, B_w_q, B_w_uk, B_w_uv, B_w_o, gate_w):
    def _A_ref(x, wqkv, wo):
        B, S, D = x.shape
        H = 32; Dh = D // H
        W, dil = 8, 2
        qkv = (lambda x, *d: x.permute(*d))((x @ wqkv).reshape(B, S, 3, H, Dh), 2, 0, 3, 1, 4)
        q, k, v = qkv[0], qkv[1], qkv[2]
        scale = Dh ** -0.5
        pos = torch.arange(S)
        off = torch.arange(W) * dil
        idx = pos[:, None] - off[None, :]
        mask = idx >= 0
        idx_c = torch.where(mask, idx, 0).reshape(-1)
        kg = k[:, :, idx_c, :].reshape(B, H, S, W, Dh)
        vg = v[:, :, idx_c, :].reshape(B, H, S, W, Dh)
        logits = torch.einsum("bhsd,bhswd->bhsw", q, kg) * scale
        logits = torch.where(mask[None, None, :, :], logits, -1e9)
        attn = _softmax(logits, axis=-1)
        o = torch.einsum("bhsw,bhswd->bhsd", attn, vg)
        return (lambda x, *d: x.permute(*d))(o, 0, 2, 1, 3).reshape(B, S, D) @ wo

    def _B_ref(x, c_kv, w_q, w_uk, w_uv, w_o):
        B, Sq, M = x.shape[0], x.shape[1], x.shape[2]
        Sk = c_kv.shape[1]
        H, D = w_q.shape[1], w_q.shape[2]
        q = torch.einsum("bqm,mhd->bhqd", x, w_q)
        k = torch.einsum("bkc,chd->bhkd", c_kv, w_uk)
        v = torch.einsum("bkc,chd->bhkd", c_kv, w_uv)
        scores = torch.einsum("bhqd,bhkd->bhqk", q, k) * (D ** -0.5)
        off = Sk - Sq
        qi = torch.arange(Sq)[:, None]
        kj = torch.arange(Sk)[None, :]
        cmask = kj <= (qi + off)
        scores = torch.where(cmask[None, None], scores, -1e9)
        p = _softmax(scores, axis=-1)
        ctx = torch.einsum("bhqk,bhkd->bhqd", p, v)
        return torch.einsum("bhqd,hdm->bqm", ctx, w_o)

    x = A_x
    g = _sigmoid((x * gate_w).sum(-1, keepdims=True))
    a = _A_ref(x, A_wqkv, A_wo)
    b = _B_ref(x, B_c_kv, B_w_q, B_w_uk, B_w_uv, B_w_o)
    return g * a + (1 - g) * b
```

```python
def v(i, n=1): return f"v{i}" if n == 1 else f"v[{i}:{i+n-1}]"
def a(i, n=1): return f"a{i}" if n == 1 else f"a[{i}:{i+n-1}]"
def s(i, n=1): return f"s{i}" if n == 1 else f"s[{i}:{i+n-1}]"

class R:
    __slots__ = ("k", "i", "n")
    def __init__(self, k, i, n=1): self.k, self.i, self.n = k, i, n
    def __str__(self): return f"{self.k}{self.i}" if self.n == 1 else f"{self.k}[{self.i}:{self.i+self.n-1}]"
    __repr__ = __str__
    def __format__(self, spec): return str(self)
    def __getitem__(self, x):
        if isinstance(x, slice):
            st = x.start or 0; en = self.n if x.stop is None else x.stop
            assert 0 <= st < en <= self.n, (self, x)
            return R(self.k, self.i + st, en - st)
        assert 0 <= x < self.n, (self, x)
        return R(self.k, self.i + x, 1)
    def sub(self, off, n): return self[off:off + n]

class Alloc:
    def __init__(self, kind, lo, hi): self.k, self.cur, self.hi = kind, lo, hi; self.top = lo
    def __call__(self, n=1, align=None):
        al = align or (1 if n == 1 else (2 if self.k != 's' else (2 if n == 2 else 4)))
        self.cur = (self.cur + al - 1) // al * al
        r = R(self.k, self.cur, n); self.cur += n
        assert self.cur <= self.hi, f"out of {self.k} regs: {self.cur} > {self.hi}"
        self.top = max(self.top, self.cur)
        return r
    def mark(self): return self.cur
    def release(self, m): self.cur = m

class Asm:
    def __init__(self): self.lines = []
    def __call__(self, x):
        if isinstance(x, (list, tuple)):
            for y in x: self(y)
        else:
            for l in str(x).split("\n"):
                l = l.strip()
                if l: self.lines.append(l)
    def label(self, n): self.lines.append(n + ":")
    def text(self):
        return "\n".join((l if l.endswith(":") or l.startswith(".") or l.startswith(";") else "    " + l) for l in self.lines) + "\n"

def kernel_header(name):
    return f""".globl {name}
.p2align 8
.type {name},@function
{name}:"""

def kernel_desc(name, vgpr=512, sgpr=102, accum=256):
    return f""".amdhsa_kernel {name}
  .amdhsa_next_free_vgpr {vgpr}
  .amdhsa_next_free_sgpr {sgpr}
  .amdhsa_accum_offset {accum}
  .amdhsa_group_segment_fixed_size 0
  .amdhsa_kernarg_size 104
  .amdhsa_user_sgpr_count 2
  .amdhsa_user_sgpr_kernarg_segment_ptr 1
  .amdhsa_system_sgpr_workgroup_id_x 1
  .amdhsa_ieee_mode 0
  .amdhsa_dx10_clamp 0
.end_amdhsa_kernel"""
```

```python
import re, sys
import numpy as np

U32 = np.uint32
LANES = np.arange(64, dtype=np.uint32)
VCC, M0, EXEC = 106, 124, 126
np.seterr(all="ignore")

class EmuError(Exception): pass

def f2u(x): return np.asarray(x, dtype=np.float32).view(np.uint32)
def u2f(x): return np.asarray(x, dtype=np.uint32).view(np.float32)
def bf16_rne(f):
    u = f2u(f).astype(np.uint64)
    r = ((u + 0x7FFF + ((u >> 16) & 1)) >> 16).astype(np.uint32) & 0xFFFF
    nan = np.isnan(np.asarray(f, dtype=np.float32))
    return np.where(nan, 0x7FC0, r).astype(np.uint32)

INLINE_F = {"0.5": 0.5, "-0.5": -0.5, "1.0": 1.0, "-1.0": -1.0, "2.0": 2.0, "-2.0": -2.0, "4.0": 4.0, "-4.0": -4.0}

class Op:
    __slots__ = ("k", "i", "n", "val", "neg", "abs")
    def __init__(self, k, i=0, n=1, val=0): self.k, self.i, self.n, self.val, self.neg, self.abs = k, i, n, val, False, False
    def regs(self):
        if self.k == 'v': return [('v', self.i + j) for j in range(self.n)]
        if self.k == 's': return [('s', self.i + j) for j in range(self.n)]
        return []

def parse_op(t, accum=256):
    t = t.strip()
    neg = ab = False
    if t in INLINE_F: return Op('c', val=int(f2u(INLINE_F[t])))
    if t.startswith("-") and not re.match(r"-\d|-0x", t): neg = True; t = t[1:]
    m = re.match(r"abs\((.*)\)$", t) or re.match(r"\|(.*)\|$", t)
    if m: ab = True; t = m.group(1)
    m = re.match(r"([vas])(\d+)$", t)
    if m: k, i, n = m.group(1), int(m.group(2)), 1
    else:
        m = re.match(r"([vas])\[(\d+):(\d+)\]$", t)
        if m: k, i, n = m.group(1), int(m.group(2)), int(m.group(3)) - int(m.group(2)) + 1
        else:
            named = {"vcc": (VCC, 2), "vcc_lo": (VCC, 1), "vcc_hi": (VCC + 1, 1), "exec": (EXEC, 2), "exec_lo": (EXEC, 1),
                     "exec_hi": (EXEC + 1, 1), "m0": (M0, 1)}
            if t in named: return Op('s', *named[t])
            if t == "off": return Op('off')
            try: return Op('c', val=int(t, 0))
            except ValueError: return Op('label', val=t)
    if k == 'a': k, i = 'v', i + accum
    else:
        if k == 'v': assert i + n <= accum, t
    o = Op(k, i, n); o.neg, o.abs = neg, ab
    return o

class Inst:
    __slots__ = ("mn", "ops", "mods", "line", "text", "cls", "rd", "wr", "fn", "target", "ws", "srcc", "ab")

def split_ops(s):
    out, d, cur = [], 0, ""
    for ch in s:
        if ch in "[(": d += 1
        if ch in "])": d -= 1
        if ch == "," and d == 0: out.append(cur); cur = ""
        else: cur += ch
    if cur.strip(): out.append(cur)
    return out

TRANS = ("v_exp_f32", "v_log_f32", "v_rcp_f32", "v_rsq_f32", "v_sqrt_f32")

class Mem:
    def __init__(self): self.bufs = []; self.next = 0x7000_0000_0000
    def add(self, arr, name):
        a = np.ascontiguousarray(arr).view(np.uint8).reshape(-1)
        base = self.next; self.next += (len(a) + (1 << 22)) // (1 << 21) * (1 << 21)
        self.bufs.append((base, a, name)); return base
    def find(self, addr):
        for b, a, n in self.bufs:
            if b <= addr < b + len(a) + 1: return b, a, n
        raise EmuError(f"address {addr:#x} not in any buffer")

class WG:
    def __init__(self, lds_bytes, nw):
        self.lds = np.zeros(163840 // 4, np.uint32); self.lds[:] = 0x7FC1DEAD
        self.size = lds_bytes
        n = 163840 // 4
        self.w_wave = np.full(n, -1, np.int8)
        self.w_epoch = np.full(n, -1, np.int32)
        self.r_epoch = np.full((nw, n), -1, np.int32)
        self.epoch = 0; self.waves = []; self.arrived = 0

PEND = 1 << 30

class Wave:
    def __init__(self, emu, wg, wid, wgid, pc):
        self.e, self.wg, self.wid, self.pc = emu, wg, wid, pc
        self.s = np.zeros(128, np.uint64); self.sw = np.zeros(128, bool)
        self.v = np.full((512, 64), 0x7FC0BEEF, np.uint32); self.vw = np.zeros(512, bool)
        self.scc = 0; self.done = False; self.at_bar = False
        self.s[0] = emu.kernarg & 0xFFFFFFFF; self.s[1] = emu.kernarg >> 32; self.s[2] = wgid
        self.sw[[0, 1, 2, EXEC, EXEC + 1]] = True
        self.s[EXEC] = self.s[EXEC + 1] = 0xFFFFFFFF
        self.v[0] = LANES + 64 * wid; self.vw[0] = True
        self.em = np.ones(64, bool); self.full = True
        self.vmq = []; self.lgq = []; self.pend = {}
        self.hist = []; self.slot = 0
        self.t = 0; self.mfma_free = 0; self.vec_ok = 0; self.marks = []; self.ninst = 0; self.last_trans = False
    def upd_exec(self):
        x = int(self.s[EXEC]) | (int(self.s[EXEC + 1]) << 32)
        self.em = ((x >> np.arange(64, dtype=np.uint64).astype(object)) & 1).astype(bool); self.full = x == (1 << 64) - 1
    def rs(self, o):
        if o.k == 'c': return o.val & 0xFFFFFFFF
        return int(self.s[o.i])
    def rs64(self, o):
        if o.k == 'c': return o.val & 0xFFFFFFFFFFFFFFFF
        return int(self.s[o.i]) | (int(self.s[o.i + 1]) << 32)
    def wsr(self, o, x):
        self.s[o.i] = x & 0xFFFFFFFF
        if o.i in (EXEC, EXEC + 1): self.upd_exec()
    def ws64(self, o, x):
        self.s[o.i] = x & 0xFFFFFFFF; self.s[o.i + 1] = (x >> 32) & 0xFFFFFFFF
        if o.i == EXEC: self.upd_exec()
    def rv(self, o, j=0):
        if o.k == 'v': return self.v[o.i + j]
        if o.k == 's': return np.full(64, int(self.s[o.i + j]), np.uint32)
        return np.full(64, o.val & 0xFFFFFFFF, np.uint32)
    def rf(self, o, j=0):
        x = self.rv(o, j)
        if o.k == 'c' and -16 <= o.val <= 64 and o.val != 0: raise EmuError("int inline const used as float")
        if o.abs: x = x & U32(0x7FFFFFFF)
        if o.neg: x = x ^ U32(0x80000000)
        return x.view(np.float32)
    def wv(self, o, x, j=0):
        x = np.asarray(x)
        if x.dtype == np.float32: x = x.view(np.uint32)
        if self.full: self.v[o.i + j] = x
        else: self.v[o.i + j] = np.where(self.em, x, self.v[o.i + j])
    def mask(self, o):
        x = self.rs64(o)
        return np.array([(x >> i) & 1 for i in range(64)], bool)
    def wmask(self, o, m):
        m = m & self.em
        self.ws64(o, int(np.packbits(m[::-1]).view(">u8")[0]))

def sx(x): x = int(x) & 0xFFFFFFFF; return x - (1 << 32) if x >> 31 else x

B128_GROUPS = [list(range(0, 4)) + list(range(12, 16)) + list(range(20, 28)), list(range(4, 12)) + list(range(16, 20)) + list(range(28, 32))]
B128_GROUPS += [[x + 32 for x in g] for g in B128_GROUPS]

class Emu:
    def __init__(self, text, accum=256):
        self.accum = accum
        self.code = []; self.labels = {}; self.mem = Mem(); self.warn = {}; self.conf = {}
        self.strict_uninit = True
        in_text = True
        for ln, raw in enumerate(text.split("\n"), 1):
            l = raw.split(";")[0].strip()
            mk = re.search(r";\s*@mark\s+(\S+)", raw)
            if mk and not l:
                i = Inst(); i.mn = "@mark"; i.text = mk.group(1); i.line = ln; i.cls = "X"; i.rd = i.wr = []; i.ws = 0; i.fn = None
                self.code.append(i); continue
            if not l: continue
            if l.startswith(".section"): in_text = False
            if l.startswith(".text"): in_text = True
            if l.startswith(".") and not l.endswith(":"): continue
            if not in_text: continue
            if l.endswith(":"): self.labels[l[:-1]] = len(self.code); continue
            self.code.append(self.decode(l, ln))
        for i in self.code:
            if i.mn.startswith("s_cbranch") or i.mn == "s_branch": i.target = self.labels[i.ops[0].val]
    def w(self, inst, msg):
        k = (inst.line, msg)
        if k not in self.warn:
            self.warn[k] = 0; print(f"[emu] line {inst.line}: {inst.text}: {msg}")
        self.warn[k] += 1

    def decode(self, l, ln):
        p = l.split(None, 1); mn = re.sub(r"_e(32|64)$", "", p[0]); rest = p[1] if len(p) > 1 else ""
        i = Inst(); i.mn, i.line, i.text = mn, ln, l; i.mods = {}; i.ws = 1; i.srcc = []; i.ab = []
        if mn == "s_waitcnt":
            i.ops = []; i.mods = {k: int(x) for k, x in re.findall(r"(\w+)\((\d+)\)", rest)}
        elif mn in ("buffer_inv", "buffer_wbl2"):
            i.ops = []
        else:
            parts = split_ops(rest)
            if parts:
                last = parts[-1].strip().split()
                parts[-1] = last[0]
                for m in last[1:]:
                    if ":" in m: k, x = m.split(":", 1); i.mods[k] = x
                    else: i.mods[m] = True
            i.ops = [parse_op(x, self.accum) for x in parts] if mn != "s_getreg_b32" else [parse_op(parts[0])]
        o = i.ops
        R = lambda *xs: [r for x in xs for r in x.regs()]
        if mn.startswith("v_mfma"):
            i.cls = "M"; i.wr = R(o[0]); i.rd = R(o[1], o[2], o[3]); i.srcc = R(o[3]); i.ab = R(o[1], o[2])
        elif mn.startswith("v_"):
            i.cls = "T" if mn in TRANS else "V"
            if mn.startswith("v_permlane") and "swap" in mn: i.wr = R(o[0], o[1]); i.rd = R(o[0], o[1])
            elif mn in ("v_fmac_f32", "v_dot2c_f32_bf16"): i.wr = R(o[0]); i.rd = R(*o)
            elif mn in ("v_add_co_u32",): i.wr = R(o[0], o[1]); i.rd = R(*o[2:])
            elif mn in ("v_addc_co_u32",): i.wr = R(o[0], o[1]); i.rd = R(*o[2:])
            elif mn == "v_nop": i.wr = i.rd = []
            else: i.wr = R(o[0]); i.rd = R(*o[1:])
        elif mn.startswith("ds_"):
            i.cls = "D"
            if mn.startswith("ds_read") or mn.startswith("ds_bperm"): i.wr = R(o[0]); i.rd = R(*o[1:])
            else: i.wr = []; i.rd = R(*o)
        elif mn.startswith("buffer_") or mn.startswith("global_"):
            i.cls = "G"
            if mn in ("buffer_inv", "buffer_wbl2"): i.wr = i.rd = []
            elif mn.startswith("buffer_load") and "lds" in i.mods: i.wr = []; i.rd = R(*o) + [('s', M0)]
            elif mn.startswith("buffer_load") or mn.startswith("global_load"): i.wr = R(o[0]); i.rd = R(*o[1:])
            elif mn.startswith("buffer_atomic") and "sc0" in i.mods: i.wr = R(o[0]); i.rd = R(*o)
            else: i.wr = []; i.rd = R(*o)
        else:
            i.cls = "S"
            if mn.startswith("s_cmp") or mn.startswith("s_bitcmp"): i.wr = []; i.rd = R(*o)
            elif mn.startswith("s_cbranch_vcc"): i.wr = []; i.rd = [('s', VCC), ('s', VCC + 1)]
            elif mn in ("s_waitcnt", "s_barrier", "s_nop", "s_endpgm", "s_sleep", "s_setprio", "s_branch") or mn.startswith("s_cbranch"):
                i.wr = i.rd = []
            elif mn in ("s_addk_i32", "s_mulk_i32"): i.wr = R(o[0]); i.rd = R(o[0])
            else: i.wr = R(o[0]); i.rd = R(*o[1:])
            if mn == "s_nop": i.ws = o[0].val + 1
        i.fn = getattr(self, "x_" + mn, None)
        if i.fn is None:
            if mn in SOP2: i.fn = self.sop2
            elif mn in SCMP: i.fn = self.scmp
            elif mn in VI: i.fn = self.vint
            elif mn in VF: i.fn = self.vflt
            elif mn.startswith("v_cmp_"): i.fn = self.vcmp
            elif mn.startswith("s_load_dword"): i.fn = self.sload
            elif mn.startswith("ds_read_b") and "tr" not in mn: i.fn = self.dsread
            elif mn.startswith("ds_write_b"): i.fn = self.dswrite
            elif mn.startswith("buffer_load"): i.fn = self.bload
            elif mn.startswith("buffer_store"): i.fn = self.bstore
            else: raise EmuError(f"line {ln}: unsupported instruction {l}")
        return i

    def hazards(self, w, i):
        rd, wr = set(i.rd), set(i.wr)
        isvalu = i.cls in "VT"
        for (slot, p) in w.hist:
            d = w.slot - slot - p.ws
            need = 0; pw = set(p.wr)
            if p.cls == "M":
                four = "16x16" in p.mn
                if i.cls == "M":
                    if pw & set(i.ab): need = 8 if four else 12
                    elif pw & set(i.srcc) and (p.wr != i.srcc or p.mn != i.mn): need = 6 if four else 10
                    elif pw & wr and not (pw & set(i.srcc)): need = 0
                elif (pw & rd) or (pw & wr): need = 8 if four else 12
                if isvalu and set(p.srcc) & wr: need = max(need, 3 if four else 7)
            elif p.cls in "VT":
                pv = {r for r in pw if r[0] == 'v'}; ps = {r for r in pw if r[0] == 's'}
                if i.cls == "M" and pv & rd: need = 2
                if p.cls == "T" and i.cls == "V" and pv & rd: need = max(need, 1)
                if isvalu and ps & rd: need = max(need, 4 if i.mn in ("v_readlane_b32", "v_writelane_b32") else 2)
                if i.cls == "G" and ps & rd: need = max(need, 5)
                if i.mn in ("v_readfirstlane_b32", "v_readlane_b32") and pv & rd: need = max(need, 1)
                if (i.mn.startswith("v_permlane") or "dpp" in i.mn) and pv & rd: need = max(need, 2)
                if p.mn.startswith("v_dot2") and (isvalu or i.cls == "M") and (pv & (rd | wr)):
                    same = i.mn == p.mn
                    accop = i.ops[0] if i.mn == "v_dot2c_f32_bf16" else (i.ops[3] if same else None)
                    if not (same and not (pv & set(i.ops[1].regs() + i.ops[2].regs())) and pv & set(accop.regs())): need = max(need, 3)
                if ("sdwa" in p.mn or "op_sel" in p.mods) and isvalu and pv & (rd | wr) and not p.mn.startswith("v_pk"): need = max(need, 1)
            elif p.cls == "S":
                if ('s', M0) in pw and i.cls == "G" and "lds" in i.mods: need = 1
            elif p.cls == "G":
                if ("store_dwordx4" in p.mn or "store_dwordx3" in p.mn):
                    data = set(p.ops[0].regs() if p.mn.startswith("buffer") else p.ops[1].regs())
                    if data & wr: need = 2 if isvalu else 1
            if d < need: self.w(i, f"HAZARD: needs {need} wait states after line {p.line} ({p.text}), has {d}")
        w.hist.append((w.slot, i)); w.slot += i.ws
        while w.hist and w.slot - w.hist[0][0] > 24: w.hist.pop(0)

    def timing(self, w, i):
        t = w.t
        if i.cls == "M":
            t = max(t, w.mfma_free, w.vec_ok)
            w.mfma_free = t + (16 if "16x16" in i.mn else 32); w.vec_ok = t + 8; w.t = t + 4
        elif i.cls == "S": w.t = t + 4 * i.ws
        else:
            t = max(t, w.vec_ok)
            if i.cls == "D" and w.last_trans: t += 8
            w.t = t + (8 if i.cls in "TG" else 4)
        w.last_trans = i.cls == "T"

    def launch(self, kernel, wgids, lds, ptrs, nw=4, max_inst=2_000_000):
        ka = np.array(ptrs, dtype=np.uint64); self.kernarg = self.mem.add(ka, "kernarg")
        wgs = []
        for g in wgids:
            wg = WG(lds, nw); wg.id = g
            wg.waves = [Wave(self, wg, k, g, self.labels[kernel]) for k in range(nw)]; wgs.append(wg)
        code = self.code
        while True:
            alive = False; progress = False
            for wg in wgs:
                for w in wg.waves:
                    if w.done: continue
                    alive = True
                    if w.at_bar: continue
                    progress = True
                    while True:
                        i = code[w.pc]; w.pc += 1
                        if i.cls == "X": w.marks.append((i.text, w.t)); continue
                        w.ninst += 1
                        if w.ninst > max_inst: raise EmuError(f"instruction limit at line {i.line}")
                        for r in i.rd:
                            if r in w.pend: self.w(i, f"reads {r} with load pending (line {w.pend[r]})")
                            if not (w.vw if r[0] == 'v' else w.sw)[r[1]] and self.strict_uninit: self.w(i, f"reads unwritten {r}")
                        for r in i.wr:
                            if r in w.pend and not (i.cls == "D" and w.pend[r] < 0): self.w(i, f"writes {r} with load pending (line {w.pend[r]})")
                            (w.vw if r[0] == 'v' else w.sw)[r[1]] = True
                        self.hazards(w, i); self.timing(w, i)
                        try:
                            y = i.fn(w, i)
                        except EmuError as ex:
                            raise EmuError(f"wg {wg.id} wave {w.wid} line {i.line} [{i.text}]: {ex}")
                        if y: break
                live = [w for w in wg.waves if not w.done]
                if live and all(w.at_bar for w in live):
                    wg.epoch += 1; tm = max(w.t for w in live)
                    for w in live: w.at_bar = False; w.t = tm
                    progress = True
            if not alive: break
            if not progress: raise EmuError("deadlock")
        return wgs

    def sop2(self, w, i):
        o = i.ops; f, b64, setscc = SOP2[i.mn]
        if b64:
            r = f(w.rs64(o[1]), (w.rs64(o[2]) if o[2].n == 2 or o[2].k == 'c' else w.rs(o[2])) if len(o) > 2 else 0, w.scc)
            if isinstance(r, tuple): r, w.scc = r
            elif setscc: w.scc = int((r & 0xFFFFFFFFFFFFFFFF) != 0)
            w.ws64(o[0], r)
        else:
            r = f(w.rs(o[1]), w.rs(o[2]) if len(o) > 2 else 0, w.scc)
            if isinstance(r, tuple): r, w.scc = r
            elif setscc: w.scc = int((r & 0xFFFFFFFF) != 0)
            w.wsr(o[0], r)
    def scmp(self, w, i):
        if i.mn.endswith("64"): w.scc = int(SCMP[i.mn](w.rs64(i.ops[0]), w.rs64(i.ops[1])))
        else: w.scc = int(SCMP[i.mn](w.rs(i.ops[0]), w.rs(i.ops[1])))
    def x_s_addk_i32(self, w, i): w.wsr(i.ops[0], w.rs(i.ops[0]) + i.ops[1].val); w.scc = 0
    def x_s_and_saveexec_b64(self, w, i):
        e = int(w.s[EXEC]) | (int(w.s[EXEC + 1]) << 32); m = w.rs64(i.ops[1])
        w.ws64(i.ops[0], e); w.ws64(Op('s', EXEC, 2), e & m); w.scc = int((e & m) != 0)
    def sload(self, w, i):
        o = i.ops; a = w.rs64(o[1]) + w.rs(o[2]); b, arr, _ = self.mem.find(a)
        d = arr[a - b:a - b + 4 * o[0].n].view(np.uint32)
        for j in range(o[0].n): w.s[o[0].i + j] = d[j]; w.pend[('s', o[0].i + j)] = i.line
        w.lgq.append(("smem", i.wr, None))
    def x_s_memtime(self, w, i): w.ws64(i.ops[0], w.t); w.lgq.append(("smem", [], None))
    x_s_memrealtime = x_s_memtime
    def x_s_getreg_b32(self, w, i): w.wsr(i.ops[0], w.wg.id & 7)
    def x_s_nop(self, w, i): pass
    x_s_setprio = x_v_nop = x_s_nop
    def x_buffer_inv(self, w, i): w.vmq.append(("inv", [], None))
    x_buffer_wbl2 = x_buffer_inv
    def x_s_sleep(self, w, i): return True
    def x_s_endpgm(self, w, i): w.done = True; return True
    def x_s_barrier(self, w, i): w.at_bar = True; return True
    def x_s_branch(self, w, i): w.pc = i.target; w.t += 16
    def br(self, w, i, c):
        if c: w.pc = i.target; w.t += 16
    def x_s_cbranch_scc0(self, w, i): self.br(w, i, not w.scc)
    def x_s_cbranch_scc1(self, w, i): self.br(w, i, w.scc)
    def x_s_cbranch_vccz(self, w, i): self.br(w, i, w.rs64(Op('s', VCC, 2)) == 0)
    def x_s_cbranch_vccnz(self, w, i): self.br(w, i, w.rs64(Op('s', VCC, 2)) != 0)
    def x_s_cbranch_execz(self, w, i): self.br(w, i, not w.em.any())
    def x_s_cbranch_execnz(self, w, i): self.br(w, i, w.em.any())
    def retire(self, w, e):
        kind, regs, idx = e
        still = {r for q in (w.lgq, w.vmq) for x in q for r in x[1]}
        for r in regs:
            if r not in still: w.pend.pop(r, None)
        wg = w.wg
        if kind in ("dma", "dsw"):
            m = (wg.w_wave[idx] == w.wid) & (wg.w_epoch[idx] == PEND)
            wg.w_epoch[idx[m]] = wg.epoch
        elif kind == "dsr":
            wg.r_epoch[w.wid, idx] = wg.epoch
    def x_s_waitcnt(self, w, i):
        if "vmcnt" in i.mods:
            assert i.mods["vmcnt"] <= 63
            while len(w.vmq) > i.mods["vmcnt"]: self.retire(w, w.vmq.pop(0))
        if "lgkmcnt" in i.mods:
            n = i.mods["lgkmcnt"]; assert n <= 15
            if n and any(e[0] == "smem" for e in w.lgq): self.w(i, "counted lgkmcnt with SMEM outstanding")
            while len(w.lgq) > n: self.retire(w, w.lgq.pop(0))

    def vint(self, w, i):
        o = i.ops; w.wv(o[0], VI[i.mn](*[w.rv(x) for x in o[1:]]).astype(np.uint32))
    def vflt(self, w, i):
        o = i.ops; w.wv(o[0], VF[i.mn](*[w.rf(x) for x in o[1:]]).astype(np.float32))
    def x_v_fmac_f32(self, w, i):
        o = i.ops; w.wv(o[0], (w.rf(o[1]).astype(np.float64) * w.rf(o[2]) + w.rf(o[0])).astype(np.float32))
    def vcmp(self, w, i):
        _, _, c, t = i.mn.split("_"); o = i.ops
        if t == "f32": a, b = w.rf(o[1]), w.rf(o[2])
        elif t == "i32": a, b = w.rv(o[1]).view(np.int32), w.rv(o[2]).view(np.int32)
        else: a, b = w.rv(o[1]), w.rv(o[2])
        f = {"lt": lambda: a < b, "le": lambda: a <= b, "gt": lambda: a > b, "ge": lambda: a >= b, "eq": lambda: a == b, "ne": lambda: a != b,
             "neq": lambda: a != b, "nge": lambda: ~(a >= b), "ngt": lambda: ~(a > b), "nle": lambda: ~(a <= b), "nlt": lambda: ~(a < b)}[c]
        w.wmask(o[0], f())
    def x_v_cndmask_b32(self, w, i):
        o = i.ops
        a = w.rv(o[1]); b = w.rv(o[2])
        if o[1].neg: a = a ^ U32(0x80000000)
        if o[2].neg: b = b ^ U32(0x80000000)
        w.wv(o[0], np.where(w.mask(o[3]), b, a))
    def x_v_readfirstlane_b32(self, w, i): w.wsr(i.ops[0], int(w.rv(i.ops[1])[np.argmax(w.em)]))
    def x_v_readlane_b32(self, w, i): w.wsr(i.ops[0], int(w.rv(i.ops[1])[w.rs(i.ops[2]) & 63]))
    def x_v_writelane_b32(self, w, i): w.v[i.ops[0].i][w.rs(i.ops[2]) & 63] = w.rs(i.ops[1])
    def x_v_cvt_pk_bf16_f32(self, w, i):
        o = i.ops; w.wv(o[0], bf16_rne(w.rf(o[1])) | (bf16_rne(w.rf(o[2])) << U32(16)))
    def x_v_cvt_f32_u32(self, w, i): w.wv(i.ops[0], w.rv(i.ops[1]).astype(np.float32))
    def pk(self, w, i, f):
        o = i.ops
        def hi(k):
            x = o[k]
            sel = i.mods.get("op_sel_hi", "[1,1,1]").strip("[]").split(",")
            return w.rf(x, 1) if (x.n == 2 and sel[k - 1] == "1") else w.rf(x, 0)
        lo_ = f(*[w.rf(x, 0) for x in o[1:]]); hi_ = f(*[hi(k) for k in range(1, len(o))])
        w.wv(o[0], lo_.astype(np.float32), 0); w.wv(o[0], hi_.astype(np.float32), 1)
    def x_v_pk_mul_f32(self, w, i): self.pk(w, i, lambda a, b: a * b)
    def x_v_pk_add_f32(self, w, i): self.pk(w, i, lambda a, b: a + b)
    def x_v_pk_fma_f32(self, w, i): self.pk(w, i, lambda a, b, c: a.astype(np.float64) * b + c)
    @staticmethod
    def dot2(a, b, c):
        lo = lambda x: (x << U32(16)).view(np.float32).astype(np.float64)
        hi = lambda x: (x & U32(0xFFFF0000)).view(np.float32).astype(np.float64)
        return (lo(a) * lo(b) + hi(a) * hi(b) + c).astype(np.float32)
    def x_v_dot2_f32_bf16(self, w, i): o = i.ops; w.wv(o[0], self.dot2(w.rv(o[1]), w.rv(o[2]), w.rf(o[3])))
    def x_v_dot2c_f32_bf16(self, w, i): o = i.ops; w.wv(o[0], self.dot2(w.rv(o[1]), w.rv(o[2]), w.rf(o[0])))
    def x_v_permlane32_swap_b32(self, w, i):
        d, s_ = w.v[i.ops[0].i], w.v[i.ops[1].i]
        t = s_[:32].copy(); s_[:32] = d[32:]; d[32:] = t
    def x_v_permlane16_swap_b32(self, w, i):
        d, s_ = w.v[i.ops[0].i], w.v[i.ops[1].i]
        for b in (0, 32):
            t = s_[b:b + 16].copy(); s_[b:b + 16] = d[b + 16:b + 32]; d[b + 16:b + 32] = t
    def x_v_mbcnt_lo_u32_b32(self, w, i):
        assert i.ops[1].val == -1; w.wv(i.ops[0], np.minimum(LANES, 32) + w.rv(i.ops[2]))
    def x_v_mbcnt_hi_u32_b32(self, w, i):
        assert i.ops[1].val == -1; w.wv(i.ops[0], np.maximum(LANES, 32) - U32(32) + w.rv(i.ops[2]))
    def unpack(self, w, o):
        x = w.v[o.i:o.i + 4]
        r = np.empty((64, 8), np.uint32); r[:, 0::2] = (x << U32(16)).T; r[:, 1::2] = (x & U32(0xFFFF0000)).T
        return r.view(np.float32)
    def x_v_mfma_f32_16x16x32_bf16(self, w, i):
        o = i.ops
        if not w.full: self.w(i, "MFMA with partial exec")
        a = self.unpack(w, o[1]).reshape(4, 16, 8).transpose(1, 0, 2).reshape(16, 32)
        b = self.unpack(w, o[2]).reshape(4, 16, 8).transpose(1, 0, 2).reshape(16, 32)
        d = a @ b.T
        d = d.reshape(4, 4, 16).transpose(1, 0, 2).reshape(4, 64)
        if o[3].k == 'v': d = d + w.v[o[3].i:o[3].i + 4].view(np.float32)
        else: assert o[3].val == 0
        w.v[o[0].i:o[0].i + 4] = d.view(np.uint32)

    def ldsidx(self, w, i, addr, nd, align):
        a = addr.astype(np.int64) + int(i.mods.get("offset", "0"), 0)
        act = a[w.em]
        if (act % align).any(): raise EmuError(f"misaligned LDS address {act[act % align != 0][0]}")
        if (act + 4 * nd > w.wg.size).any(): raise EmuError(f"LDS address out of range {act.max()}")
        return np.where(w.em, a, 0)[:, None] // 4 + np.arange(nd)[None, :]
    def chk_read(self, w, i, idx):
        wg = w.wg; ww = wg.w_wave[idx]; we = wg.w_epoch[idx]
        if (ww < 0).any(): self.w(i, "reads never-written LDS")
        other = (ww != w.wid) & (ww >= 0)
        if (other & (we >= wg.epoch)).any(): self.w(i, "LDS RAW race (other wave's write not waited+barriered)")
        own = (ww == w.wid) & (we == PEND)
        if own.any():
            pend_dma = [e[2] for e in w.vmq if e[0] == "dma"]
            if pend_dma and np.isin(idx[own], np.concatenate(pend_dma)).any(): self.w(i, "LDS read of own pending DMA")
        wg.r_epoch[w.wid, idx] = PEND
    def chk_write(self, w, i, idx, dma):
        wg = w.wg
        for k in range(len(wg.waves)):
            re_ = wg.r_epoch[k, idx]
            if k != w.wid and (re_ >= wg.epoch).any(): self.w(i, f"LDS WAR race vs wave {k}")
            if k == w.wid and dma and (re_ == PEND).any(): self.w(i, "DMA over own un-waited ds_read")
        other = (wg.w_wave[idx] != w.wid) & (wg.w_wave[idx] >= 0)
        if (other & (wg.w_epoch[idx] >= wg.epoch)).any(): self.w(i, "LDS WAW race")
        wg.w_wave[idx] = w.wid; wg.w_epoch[idx] = PEND
    def banks(self, w, i, idx, groups, nb):
        extra = 0
        for g in groups:
            g = [x for x in g if w.em[x]]
            if not g: continue
            u = np.unique(idx[g].reshape(-1)); extra += np.bincount(u % nb).max() - 1
        if extra:
            k = (i.line, i.text); self.conf[k] = max(self.conf.get(k, 0), extra)
    def dsread(self, w, i):
        o = i.ops; nd = o[0].n
        idx = self.ldsidx(w, i, w.rv(o[1]), nd, 4 * nd if nd != 3 else 16)
        act = idx[w.em].reshape(-1); self.chk_read(w, i, act)
        if nd == 4: self.banks(w, i, idx, B128_GROUPS, 64)
        elif nd == 2: self.banks(w, i, idx, [range(32), range(32, 64)], 64)
        elif nd == 1: self.banks(w, i, idx, [range(32), range(32, 64)], 32)
        for j in range(nd): w.wv(o[0], w.wg.lds[idx[:, j]], j)
        for r in i.wr: w.pend[r] = -i.line
        w.lgq.append(("dsr", i.wr, act))
    def x_ds_read_b64_tr_b16(self, w, i):
        o = i.ops
        if not w.full: self.w(i, "tr read with partial exec")
        idx = self.ldsidx(w, i, w.rv(o[1]), 2, 8); self.chk_read(w, i, idx.reshape(-1))
        self.banks(w, i, idx, [range(32), range(32, 64)], 64)
        d = np.ascontiguousarray(w.wg.lds[idx]).view(np.uint16).reshape(4, 4, 16)
        t = np.ascontiguousarray(d.transpose(0, 2, 1)).reshape(64, 4).view(np.uint32)
        w.wv(o[0], t[:, 0], 0); w.wv(o[0], t[:, 1], 1)
        for r in i.wr: w.pend[r] = -i.line
        w.lgq.append(("dsr", i.wr, idx.reshape(-1)))
    def dswrite(self, w, i):
        o = i.ops
        if i.mn == "ds_write_b16" or i.mn == "ds_write_b16_d16_hi":
            a = w.rv(o[0]).astype(np.int64) + int(i.mods.get("offset", "0"), 0)
            x = w.rv(o[1]); x = (x >> U32(16)) if "hi" in i.mn else x
            act = (a[w.em] // 4); self.chk_write(w, i, act, False)
            w.wg.lds.view(np.uint16)[a[w.em] // 2] = x[w.em].astype(np.uint16)
            w.lgq.append(("dsw", [], act)); return
        nd = o[1].n
        idx = self.ldsidx(w, i, w.rv(o[0]), nd, 4 * nd if nd != 3 else 16)
        act = idx[w.em].reshape(-1); self.chk_write(w, i, act, False)
        gs = {1: 32, 2: 16, 3: 8, 4: 8}[nd]
        self.banks(w, i, idx, [range(k, k + gs) for k in range(0, 64, gs)], 32)
        for j in range(nd): w.wg.lds[idx[w.em, j]] = w.rv(o[1], j)[w.em]
        w.lgq.append(("dsw", [], act))
    def x_ds_or_b32(self, w, i):
        o = i.ops; idx = self.ldsidx(w, i, w.rv(o[0]), 1, 4)[w.em, 0]
        np.bitwise_or.at(w.wg.lds, idx, w.rv(o[1])[w.em])
        wg = w.wg; wg.w_wave[idx] = w.wid; wg.w_epoch[idx] = PEND
        w.lgq.append(("dsw", [], idx))
    def x_ds_bpermute_b32(self, w, i):
        o = i.ops; w.wv(o[0], w.rv(o[2])[(w.rv(o[1]) >> U32(2)) & U32(63)])
        for r in i.wr: w.pend[r] = -i.line
        w.lgq.append(("x", i.wr, None))

    def baddr(self, w, i, vo, srd, so, nbytes):
        base = int(w.s[srd.i]) | ((int(w.s[srd.i + 1]) & 0xFFFF) << 32); nrec = int(w.s[srd.i + 2])
        assert int(w.s[srd.i + 3]) == 0x20000 and int(w.s[srd.i + 1]) >> 16 == 0
        off = np.zeros(64, np.int64)
        if "offen" in i.mods: off = w.rv(vo).astype(np.int64)
        io = int(i.mods.get("offset", "0"), 0); assert io < 4096
        off = off + io + w.rs(so)
        b, arr, name = self.mem.find(base)
        if base - b + nrec > len(arr): raise EmuError(f"SRD range exceeds buffer {name}")
        al = min(nbytes, 4)
        if (off[w.em] % al).any(): raise EmuError("misaligned global access")
        return arr, base - b, off, nrec, io
    def bload(self, w, i):
        o = i.ops; lds = "lds" in i.mods
        if not w.em.any(): self.w(i, "VMEM with exec=0")
        if i.mn in ("buffer_load_ushort", "buffer_load_short_d16"):
            arr, b0, off, nrec, io = self.baddr(w, i, o[1], o[2], o[3], 2)
            ok = (off + 2 <= nrec); a = np.where(ok, b0 + off, 0)
            x = np.where(ok, arr[a].astype(np.uint32) | (arr[a + 1].astype(np.uint32) << U32(8)), 0)
            w.wv(o[0], x.astype(np.uint32))
        else:
            nd = {"": 1, "x2": 2, "x3": 3, "x4": 4}[i.mn[len("buffer_load_dword"):]]
            vo, srd, so = (o[0], o[1], o[2]) if lds else (o[1], o[2], o[3])
            arr, b0, off, nrec, io = self.baddr(w, i, vo, srd, so, 4 * nd)
            a32 = arr[:len(arr) // 4 * 4].view(np.uint32)
            aa = off[:, None] + 4 * np.arange(nd)[None, :]
            ok = aa + 4 <= nrec
            x = np.where(ok, a32[np.where(ok, (b0 + aa) // 4, 0)], 0).astype(np.uint32)
            if lds:
                la = (int(w.s[M0]) & 0x3FFFC) + io + np.arange(64)[:, None] * 4 * nd + 4 * np.arange(nd)[None, :]
                if (la[w.em] + 4 > w.wg.size).any(): raise EmuError("LDS DMA out of range")
                idx = (la[w.em] // 4).reshape(-1); self.chk_write(w, i, idx, True)
                w.wg.lds[idx] = x[w.em].reshape(-1)
                w.vmq.append(("dma", [], idx));
                if len(w.vmq) > 63: self.w(i, "vmcnt overflow")
                return
            for j in range(nd): w.wv(o[0], x[:, j], j)
        for r in i.wr: w.pend[r] = i.line
        w.vmq.append(("ld", i.wr, None))
        if len(w.vmq) > 63: self.w(i, "vmcnt overflow")
    def bstore(self, w, i):
        o = i.ops
        if not w.em.any(): self.w(i, "VMEM with exec=0")
        if i.mn == "buffer_store_short":
            arr, b0, off, nrec, io = self.baddr(w, i, o[1], o[2], o[3], 2)
            ok = (off + 2 <= nrec) & w.em
            arr[:len(arr) // 2 * 2].view(np.uint16)[(b0 + off[ok]) // 2] = w.rv(o[0])[ok].astype(np.uint16)
        else:
            nd = o[0].n
            arr, b0, off, nrec, io = self.baddr(w, i, o[1], o[2], o[3], 4 * nd)
            a32 = arr[:len(arr) // 4 * 4].view(np.uint32)
            for j in range(nd):
                ok = (off + 4 * j + 4 <= nrec) & w.em
                if (w.em & ~ok).any(): self.w(i, "store dropped (out of range)")
                a32[(b0 + off[ok]) // 4 + j] = w.rv(o[0], j)[ok]
        w.vmq.append(("st", [], None))
        if len(w.vmq) > 63: self.w(i, "vmcnt overflow")
    def atomic(self, w, i, f):
        o = i.ops; arr, b0, off, nrec, io = self.baddr(w, i, o[1], o[2], o[3], 4)
        a32 = arr[:len(arr) // 4 * 4].view(np.uint32); old = np.zeros(64, np.uint32); x = w.rv(o[0])
        for l in np.nonzero(w.em & (off + 4 <= nrec))[0]:
            k = (b0 + off[l]) // 4; old[l] = a32[k]; a32[k] = f(int(a32[k]), int(x[l])) & 0xFFFFFFFF
        if "sc0" in i.mods:
            w.wv(o[0], old)
            for r in i.wr: w.pend[r] = i.line
        w.vmq.append(("at", i.wr, None))
    def x_buffer_atomic_add(self, w, i): self.atomic(w, i, lambda a, b: a + b)
    def x_buffer_atomic_or(self, w, i): self.atomic(w, i, lambda a, b: a | b)

M32 = 0xFFFFFFFF
SOP2 = {
    "s_mov_b32": (lambda a, b, c: a, 0, 0), "s_movk_i32": (lambda a, b, c: a, 0, 0), "s_mov_b64": (lambda a, b, c: a, 1, 0),
    "s_add_u32": (lambda a, b, c: (a + b, int(a + b > M32)), 0, 0), "s_addc_u32": (lambda a, b, c: (a + b + c, int(a + b + c > M32)), 0, 0),
    "s_sub_u32": (lambda a, b, c: (a - b, int(b > a)), 0, 0), "s_add_i32": (lambda a, b, c: (a + b, 0), 0, 0), "s_sub_i32": (lambda a, b, c: (a - b, 0), 0, 0),
    "s_mul_i32": (lambda a, b, c: a * b, 0, 0), "s_mul_hi_u32": (lambda a, b, c: (a * b) >> 32, 0, 0),
    "s_lshl_b32": (lambda a, b, c: a << (b & 31), 0, 1), "s_lshr_b32": (lambda a, b, c: a >> (b & 31), 0, 1),
    "s_ashr_i32": (lambda a, b, c: sx(a) >> (b & 31), 0, 1),
    "s_lshl_b64": (lambda a, b, c: a << (b & 63), 1, 1), "s_lshr_b64": (lambda a, b, c: a >> (b & 63), 1, 1),
    "s_and_b32": (lambda a, b, c: a & b, 0, 1), "s_or_b32": (lambda a, b, c: a | b, 0, 1), "s_xor_b32": (lambda a, b, c: a ^ b, 0, 1),
    "s_andn2_b32": (lambda a, b, c: a & ~b, 0, 1), "s_not_b32": (lambda a, b, c: ~a, 0, 1),
    "s_and_b64": (lambda a, b, c: a & b, 1, 1), "s_or_b64": (lambda a, b, c: a | b, 1, 1), "s_xor_b64": (lambda a, b, c: a ^ b, 1, 1),
    "s_andn2_b64": (lambda a, b, c: a & ~b, 1, 1), "s_not_b64": (lambda a, b, c: ~a, 1, 1),
    "s_cselect_b32": (lambda a, b, c: a if c else b, 0, 0), "s_cselect_b64": (lambda a, b, c: a if c else b, 1, 0),
    "s_min_u32": (lambda a, b, c: (min(a, b), int(a < b)), 0, 0), "s_max_u32": (lambda a, b, c: (max(a, b), int(a > b)), 0, 0),
    "s_min_i32": (lambda a, b, c: (min(sx(a), sx(b)), int(sx(a) < sx(b))), 0, 0), "s_max_i32": (lambda a, b, c: (max(sx(a), sx(b)), int(sx(a) > sx(b))), 0, 0),
    "s_lshl1_add_u32": (lambda a, b, c: ((a << 1) + b, 0), 0, 0), "s_lshl2_add_u32": (lambda a, b, c: ((a << 2) + b, 0), 0, 0),
    "s_lshl3_add_u32": (lambda a, b, c: ((a << 3) + b, 0), 0, 0), "s_lshl4_add_u32": (lambda a, b, c: ((a << 4) + b, 0), 0, 0),
    "s_bfe_u32": (lambda a, b, c: (a >> (b & 31)) & ((1 << ((b >> 16) & 127)) - 1), 0, 1),
}
SCMP = {
    "s_cmp_eq_u32": lambda a, b: a == b, "s_cmp_lg_u32": lambda a, b: a != b, "s_cmp_lt_u32": lambda a, b: a < b, "s_cmp_le_u32": lambda a, b: a <= b,
    "s_cmp_gt_u32": lambda a, b: a > b, "s_cmp_ge_u32": lambda a, b: a >= b,
    "s_cmp_eq_i32": lambda a, b: a == b, "s_cmp_lg_i32": lambda a, b: a != b, "s_cmp_lt_i32": lambda a, b: sx(a) < sx(b), "s_cmp_le_i32": lambda a, b: sx(a) <= sx(b),
    "s_cmp_gt_i32": lambda a, b: sx(a) > sx(b), "s_cmp_ge_i32": lambda a, b: sx(a) >= sx(b),
    "s_cmp_eq_u64": lambda a, b: a == b, "s_cmp_lg_u64": lambda a, b: a != b,
    "s_bitcmp1_b32": lambda a, b: (a >> (b & 31)) & 1, "s_bitcmp0_b32": lambda a, b: not ((a >> (b & 31)) & 1),
}
_31 = U32(31)
u24 = lambda x: (x & U32(0xFFFFFF)).astype(np.uint64)
VI = {
    "v_mov_b32": lambda a: a, "v_accvgpr_read_b32": lambda a: a, "v_accvgpr_write_b32": lambda a: a, "v_accvgpr_mov_b32": lambda a: a,
    "v_add_u32": lambda a, b: a + b, "v_sub_u32": lambda a, b: a - b, "v_subrev_u32": lambda a, b: b - a,
    "v_lshlrev_b32": lambda a, b: b << (a & _31), "v_lshrrev_b32": lambda a, b: b >> (a & _31),
    "v_ashrrev_i32": lambda a, b: (b.view(np.int32) >> (a & _31).astype(np.int32)).view(np.uint32),
    "v_and_b32": lambda a, b: a & b, "v_or_b32": lambda a, b: a | b, "v_xor_b32": lambda a, b: a ^ b,
    "v_mul_u32_u24": lambda a, b: u24(a) * u24(b), "v_mul_lo_u32": lambda a, b: a * b,
    "v_mul_hi_u32": lambda a, b: (a.astype(np.uint64) * b) >> np.uint64(32),
    "v_mad_u32_u24": lambda a, b, c: u24(a) * u24(b) + c, "v_add3_u32": lambda a, b, c: a + b + c,
    "v_lshl_add_u32": lambda a, b, c: (a << (b & _31)) + c, "v_add_lshl_u32": lambda a, b, c: (a + b) << (c & _31),
    "v_lshl_or_b32": lambda a, b, c: (a << (b & _31)) | c, "v_and_or_b32": lambda a, b, c: (a & b) | c, "v_or3_b32": lambda a, b, c: a | b | c,
    "v_xad_u32": lambda a, b, c: (a ^ b) + c,
    "v_bfe_u32": lambda a, b, c: (a >> (b & _31)) & ((U32(1) << (c & _31)) - U32(1)),
    "v_min_u32": np.minimum, "v_max_u32": np.maximum,
    "v_max_i32": lambda a, b: np.maximum(a.view(np.int32), b.view(np.int32)).view(np.uint32),
    "v_min_i32": lambda a, b: np.minimum(a.view(np.int32), b.view(np.int32)).view(np.uint32),
    "v_perm_b32": None,
}
def _perm(a, b, c):
    src = np.stack([(b >> U32(8 * k)) & U32(255) for k in range(4)] + [(a >> U32(8 * k)) & U32(255) for k in range(4)])
    r = np.zeros(64, np.uint32)
    for k in range(4):
        sel = (c >> U32(8 * k)) & U32(255)
        byte = np.where(sel < 8, src[np.minimum(sel, 7), np.arange(64)], np.where(sel == 12, 0, 255)).astype(np.uint32)
        r |= byte << U32(8 * k)
    return r
VI["v_perm_b32"] = _perm
VF = {
    "v_add_f32": lambda a, b: a + b, "v_sub_f32": lambda a, b: a - b, "v_subrev_f32": lambda a, b: b - a, "v_mul_f32": lambda a, b: a * b,
    "v_max_f32": np.fmax, "v_min_f32": np.fmin, "v_max3_f32": lambda a, b, c: np.fmax(np.fmax(a, b), c),
    "v_fma_f32": lambda a, b, c: a.astype(np.float64) * b + c,
    "v_exp_f32": np.exp2, "v_log_f32": np.log2, "v_rcp_f32": lambda a: np.float32(1) / a, "v_rsq_f32": lambda a: 1 / np.sqrt(a), "v_sqrt_f32": np.sqrt,
}
```

```python
import re
from emu import Emu, M0

_dec = Emu("")
SCC_W = re.compile(r"s_(add|sub|addc|lshl|lshr|ashr|and|or|xor|andn2|not|min|max|cmp|bfe|bitcmp|lshl\d_add|addk)")
SCC_R = re.compile(r"s_(cselect|addc|cbranch_scc)")

def decode(text):
    if text.endswith(":") or text.startswith(";"):
        i = _dec.decode("s_nop 0", 0); i.text = text; i.ws = 0; i.mn = "label"; return i
    if text.startswith("WAITVM"):
        i = _dec.decode("s_waitcnt vmcnt(0)", 0); i.text = text; return i
    i = _dec.decode(text.split(";")[0].strip(), 0); i.text = text
    rd, wr = list(i.rd), list(i.wr)
    i.rd, i.wr = rd, wr
    return i

def need_ws(p, i):
    rd, wr, pw = set(i.rd), set(i.wr), set(p.wr)
    isvalu = i.cls in "VT"; need = 0
    if p.cls == "M":
        if i.cls == "M":
            if pw & set(i.ab): need = 8
            elif pw & set(i.srcc) and p.wr != i.srcc: need = 6
        elif (pw & rd) or (pw & wr): need = 8
        if isvalu and set(p.srcc) & wr: need = max(need, 3)
    elif p.cls in "VT":
        pv = {r for r in pw if r[0] == 'v'}; ps = {r for r in pw if r[0] == 's'}
        if i.cls == "M" and pv & rd: need = 2
        if p.cls == "T" and i.cls == "V" and pv & rd: need = max(need, 1)
        if isvalu and ps & rd: need = max(need, 4 if i.mn in ("v_readlane_b32", "v_writelane_b32") else 2)
        if i.cls == "G" and ps & rd: need = max(need, 5)
        if i.cls == "S" and ps & rd: need = max(need, 2)
        if i.mn in ("v_readfirstlane_b32", "v_readlane_b32") and pv & rd: need = max(need, 1)
        if (i.mn.startswith("v_permlane") or "dpp" in i.mn) and pv & rd: need = max(need, 2)
        if p.mn.startswith("v_dot2") and (isvalu or i.cls == "M") and (pv & (rd | wr)):
            same = i.mn == p.mn
            accop = i.ops[0] if i.mn == "v_dot2c_f32_bf16" else (i.ops[3] if same else None)
            if not (same and not (pv & set(i.ops[1].regs() + i.ops[2].regs())) and pv & set(accop.regs())): need = max(need, 3)
    elif p.cls == "S":
        if ('s', M0) in pw and i.cls == "G" and "lds" in i.mods: need = 1
    elif p.cls == "G":
        if "store_dwordx4" in p.mn or "store_dwordx3" in p.mn:
            if set(p.ops[0].regs()) & wr: need = 2 if isvalu else 1
    return need

def short_ws(out, i):
    d = 0; miss = 0
    for p in reversed(out):
        if d >= 12: break
        miss = max(miss, need_ws(p, i) - d)
        d += p.ws
    return miss

class Node:
    def __init__(self, text, at=None, by=None, rd=(), wr=(), lead=None, tag=None, pin=False, bg=False):
        self.ins = [decode(t) for t in (text if isinstance(text, (list, tuple)) else [text])]
        self.rd = set(rd); self.wr = set(wr)
        for i in self.ins:
            self.rd |= set(i.rd); self.wr |= set(i.wr)
        self.is_m = self.ins[0].cls == "M"
        self.at, self.by, self.lead, self.tag, self.pin = at, by, lead, tag, pin
        self.preds = []; self.succs = []; self.gap = None; self.bg = bg
        for k, i in enumerate(self.ins):
            assert not SCC_R.match(i.mn) or any(SCC_W.match(x.mn) for x in self.ins[:k]), i.text
        for i in self.ins: i.target = tag
        self.isds = any(i.cls == "D" for i in self.ins)

class Region:
    DS_LEAD = 7
    def __init__(self, name=""):
        self.nodes = []; self.nm = 0; self.name = name; self.bg = False
    def add(self, text, **kw):
        kw.setdefault("bg", self.bg)
        n = Node(text, **kw); n.seq = len(self.nodes); n.pos = self.nm
        if n.is_m: n.gap = self.nm; self.nm += 1
        self.nodes.append(n); return n
    def __call__(self, text, **kw): return self.add(text, **kw)

    def schedule(self, prev=(), verbose=False):
        nodes = self.nodes
        lastw, readers = {}, {}
        for n in nodes:
            ps = {}
            for r in n.rd:
                if r in lastw: ps[lastw[r].seq] = (lastw[r], "raw")
            for r in n.wr:
                if r in lastw: ps.setdefault(lastw[r].seq, (lastw[r], "waw"))
                for q in readers.get(r, ()):
                    if q is not n: ps.setdefault(q.seq, (q, "war"))
            for r in n.rd: readers.setdefault(r, []).append(n)
            for r in n.wr: lastw[r] = n; readers[r] = []
            n.preds = list(ps.values())
            for p, k in n.preds: p.succs.append((n, k))
        NM = self.nm
        for n in reversed(nodes):
            if n.is_m: n.dl = n.gap - 1; n.hard = n.gap - 1; continue
            dl = NM - 1 if n.by is None else n.by; hard = NM - 1
            for q, k in n.succs:
                lead = 0
                if k == "raw": lead = n.lead if n.lead is not None else (self.DS_LEAD if n.isds else 1)
                dl = min(dl, q.dl - lead); hard = min(hard, q.hard)
            n.dl, n.hard = dl, hard
        out = list(prev); n0 = len(out)
        todo = [n for n in nodes if not n.is_m]
        ms = [n for n in nodes if n.is_m]
        done = set(); over = 0
        def ready(n): return all(p.seq in done for p, k in n.preds)
        def cost(n, a_free):
            c = 0
            for k, i in enumerate(n.ins):
                if i.cls == "S":
                    if a_free and k == 0: continue
                    c += i.ws
                else: c += 2 if i.cls in "TG" else 1
            return c
        def emit(n, g, force=False):
            for i in n.ins:
                m = short_ws(out, i)
                if m > 0: out.append(decode(f"s_nop {m-1}"))
                out.append(i)
            n.gap = g; done.add(n.seq); todo.remove(n)
        def fill(g):
            nonlocal over
            a_free, cap = True, 2
            while True:
                cands = [n for n in todo if (n.at is None or n.at <= g) and ready(n)]
                cands.sort(key=lambda n: (n.bg, n.dl, n.seq))
                pick = None
                if a_free:
                    for n in cands:
                        if n.ins[0].cls == "S" and cost(n, True) <= cap and short_ws(out, n.ins[0]) == 0:
                            if cost(n, True) == 0 or n is cands[0] or n.dl <= g + 1: pick = n; break
                if pick is None:
                    for n in cands:
                        if cost(n, a_free) > cap or short_ws(out, n.ins[0]) > 0: continue
                        if n.ins[0].cls == "S" and n.dl > g: continue
                        if n.ins[0].cls == "D" and out[-1].cls == "T": continue
                        pick = n; break
                if pick is None: break
                cap -= cost(pick, a_free); a_free = False; emit(pick, g)
            while True:
                f = [n for n in todo if n.hard <= g or (n.pin and n.at <= g)]
                f = [n for n in f if ready(n)]
                if not f: break
                f.sort(key=lambda n: (n.dl, n.seq)); over += cost(f[0], False)
                if verbose: print(f"  [{self.name}] forced at gap {g}: {f[0].ins[0].text}")
                emit(f[0], g)
        while True:
            f = [n for n in todo if n.hard < 0 and ready(n)]
            if not f: break
            emit(min(f, key=lambda n: n.seq), -1)
        for g, m in enumerate(ms):
            assert ready(m), (self.name, g, m.ins[0].text, [p.ins[0].text for p, k in m.preds if p.seq not in done])
            k = short_ws(out, m.ins[0])
            if k > 0:
                out.append(decode(f"s_nop {k-1}")); over += k
                if verbose: print(f"  [{self.name}] nop {k} before mfma {g}")
            out.append(m.ins[0]); done.add(m.seq)
            fill(g)
        assert not todo, (self.name, [n.ins[0].text for n in todo])
        if verbose:
            late = [(n.ins[0].text, n.gap - n.dl) for n in nodes if not n.is_m and n.gap > n.dl + 2]
            print(f"[{self.name}] mfma {NM} overflow slots {over} late {len(late)} {late[:6]}")
        return out[n0:]

def plain(texts, prev=()):
    out = list(prev); n0 = len(out)
    for t in texts:
        i = decode(t) if isinstance(t, str) else t
        i.target = getattr(i, "target", None)
        m = short_ws(out, i)
        if m > 0: out.append(decode(f"s_nop {m-1}"))
        out.append(i)
    return out[n0:]

def tagged(text, tag):
    i = decode(text); i.target = tag; return i

def fix_waits(ins, carry=(), age=5):
    out = []
    q = [(set(c), -100) for c in carry]
    nm = 0; last_m = None
    for i in ins:
        if i.mn == "s_waitcnt" and "lgkmcnt" in i.mods and not i.text.startswith("WAITVM"):
            q = q[len(q) - i.mods["lgkmcnt"]:] if i.mods["lgkmcnt"] < len(q) else q
            if i.mods["lgkmcnt"] == 0: q = []
        touch = set(i.rd) | (set(i.wr) if i.cls != "D" else set())
        k = max((n for n, e in enumerate(q) if e[0] & touch), default=-1)
        if len(q) >= 15 and i.cls == "D" and k < 0: k = 0
        if k >= 0:
            pos = len(out); nafter = 0
            if last_m is not None and (last_m + 1 >= len(out) or out[last_m + 1].cls != "S"):
                later = sum(1 for x in out[last_m + 1:] if x.cls == "D")
                if k < len(q) - later: pos = last_m + 1; nafter = later
            while k + 1 < len(q) - nafter and q[k + 1][1] <= nm - age: k += 1
            cnt = len(q) - nafter - (k + 1)
            merged = False
            if pos == len(out) and last_m is not None and last_m + 1 < len(out):
                x = out[last_m + 1]
                later = sum(1 for y in out[last_m + 1:] if y.cls == "D")
                if x.mn == "s_waitcnt" and not x.text.startswith("WAITVM") and k < len(q) - later:
                    c2 = len(q) - later - (k + 1)
                    vm = f"vmcnt({x.mods['vmcnt']}) " if "vmcnt" in x.mods else ""
                    out[last_m + 1] = decode(f"s_waitcnt {vm}lgkmcnt({min(c2, x.mods.get('lgkmcnt', 15))})"); merged = True
            if not merged: out.insert(pos, decode(f"s_waitcnt lgkmcnt({cnt})"))
            q = q[k + 1:]
        out.append(i)
        if i.cls == "D": q.append((set(i.wr), nm))
        if i.cls == "M": nm += 1; last_m = len(out) - 1
    for n, i in enumerate(out):
        if i.text.startswith("WAITVM"):
            tags = i.text.split()[1:]; cnt = 0; found = False
            for p in reversed(out[:n]):
                if p.cls == "G":
                    if getattr(p, "target", None) in tags: found = True; break
                    cnt += 1
            assert found, i.text
            assert not any(p.cls == "G" and getattr(p, "target", None) in tags for p in out[n:]), i.text
            assert cnt < 64
            out[n] = decode(f"s_waitcnt vmcnt({cnt})")
    return out, [sorted(e[0]) for e in q]

def texts(ins): return [i.text for i in ins]
```

```python
import sys, os, struct
sys.path.insert(0, os.path.dirname(os.path.abspath(__file__)))
from asmlib import *
from sched import *

NAME = "gated_mix__sliding_local_dilated__compressed_kv_cla__prompt"
SLOT = 32768
HEADSZ = 33 * SLOT
WS_KV = 0
WS_CTX = 0x2200000; CTX_RB = 146 * 1024; CTX_SZ = 128 * CTX_RB
WS_WT = 0x3600000; WT_KS = 36 * 1024; WT_SZ = 146 * WT_KS
OOB = 0x4000000
NEGBIG = 0xf149f2ca
def fbits(x): return struct.unpack("<I", struct.pack("<f", x))[0]
LOG2E = 1.4426950408889634
MF = "v_mfma_f32_16x16x32_bf16"
V = lambda i, n=1: R('v', i, n)
Ac = lambda i, n=1: R('a', i, n)
Sg = lambda i, n=1: R('s', i, n)

class Opt:
    verbose = False
    stamps = False
    st_flags = "sc1"

sWV_ = Sg(4); sH = Sg(5); sJ = Sg(6); sT = Sg(7); sT2 = Sg(3)
sC, sWK, sWVv, sX, sWQ, sA0, sA1, sKV, sCTX, sDBG, sT0, sT1, sWT = [Sg(8 + 4 * k, 4) for k in range(13)]
soW, soC1, soC2, soX1, soX2, soA0, soA1, stA0, stA1, sW4k, sK0, sV0, sSt = [Sg(60 + k) for k in range(13)]
sCH128, sScale, sRd, sWr, sSrc, sCnt, sFlag, sW8k, sCtxS, sCtxL, sRedo = [Sg(73 + k) for k in range(11)]
sFail = Sg(84, 2); sGm = Sg(86, 2); sPt = Sg(88, 2); sPt2 = Sg(90, 2); sPt3 = Sg(92, 2); sPC = Sg(94, 2)
sStamp = Sg(96, 2); sU = Sg(98); sU2 = Sg(99); sSrc2 = Sg(100); sBig = Sg(101); sPrev = soW

vL16 = V(1); vW = V(2, 4); vC = V(6, 4); vA = vC; vX = V(10, 4); rW = V(14, 8); rC = V(22, 2); rH = rC
rX = V(24, 2); rA = V(26, 4); rG = V(30); vLane = V(31); tmp = V(32, 8); Wf = [V(40 + 8 * k, 8) for k in range(3)]
Xf = [V(64, 32), V(96, 32)]
Kacc = lambda cb, rb: V(128 + 32 * cb + 4 * rb, 4)
Vacc = lambda cb, rb: Ac(128 + 32 * cb + 4 * rb, 4)
Cf = lambda buf, rb, ks: Ac(64 * buf + 8 * rb + 4 * ks, 4)
Kpk = lambda n: Ac(4 * n, 4)
Qacc = lambda cb, qb: V(128 + 16 * cb + 4 * qb, 4)
Aacc = lambda sl, qb: Ac(64 + 16 * sl + 4 * qb, 4)
Hacc = lambda sl: Ac(128 + 4 * sl, 4)
Hf = lambda ks: Ac(136 + 4 * ks, 4)
Qf = lambda qb, p: V(128 + 32 * p + 4 * qb, 4)
negm = lambda qb: V(144 + 4 * qb, 4)
CA = lambda kb: V(176 + 4 * kb, 4)
bias = lambda kb: V(208 + 4 * kb, 4)
Sr = lambda n: V(240 + 4 * (n % 4), 4)
Pf = lambda par, qb, ks: V(64 + 32 * par + 8 * qb + 4 * ks, 4)
def Oacc(db, qb):
    n = db * 4 + qb
    return Ac(4 * n, 4) if n < 16 else Ac(144 + 4 * (n - 16), 4)
Lacc = lambda qb: Ac(208 + 4 * qb, 4)
ones = Ac(224, 4)
Kf = lambda kb, ks: Ac(64 + 16 * (kb & 1) + 4 * ks, 4)
Vf = lambda n, ks: Ac(96 + 8 * (n % 4) + 4 * ks, 4)
vRd = V(2); omg = V(4, 4); et = V(8, 24)

def srd(r, size): return [f"s_mov_b32 {r[2]}, {size}", f"s_mov_b32 {r[3]}, 0x20000"]

class Win:
    def __init__(self): self.w = {}
    def off(self, Rg, reg, addr, **kw):
        win = addr >> 16; cur = self.w.get(reg.i, 0)
        if win != cur:
            Rg(f"v_add_u32 {reg}, {((win - cur) << 16) & 0xffffffff:#x}, {reg}", **kw); self.w[reg.i] = win
        return addr & 0xffff

stamp_n = [0]
def stamp(name):
    out = [f"; @mark {name}"]
    if Opt.stamps:
        k = stamp_n[0]; stamp_n[0] += 1
        out += ["s_waitcnt lgkmcnt(0)", f"s_memrealtime {sStamp}", "s_waitcnt lgkmcnt(0)", f"v_writelane_b32 v0, {sStamp[0]}, {k}"]
        Opt.stamp_names.append(name)
    return out

def dma(vo, srd_, so, off=0, fl=""):
    return f"buffer_load_dwordx4 {vo}, {srd_}, {so} offen" + (f" offset:{off}" if off else "") + (f" {fl}" if fl else "") + " lds"

def slot_desc(i):
    if i == 0: return ("c", 0, 0), ("c", 0, 1)
    if i <= 16:
        s, hi = (i - 1) >> 1, (i - 1) & 1
        return ("wv" if hi else "wk", s), (("c", s + 1, hi) if s < 7 else ("x", 0, hi))
    s, hi = (i - 17) >> 1, (i - 17) & 1
    return ("wa" if hi else "wq", s), (("x", s + 1, hi) if s < 8 else ("t", hi))

def slot_dmas(i):
    base = (i % 5) * SLOT; out = []
    for area, d in enumerate(slot_desc(i)):
        lb = base + area * 16384; k = d[0]
        if k == "wa":
            for q in range(4):
                out.append(f"s_add_u32 m0, {sW4k}, {lb + 1024 * q}")
                out.append(dma(vA[q], sA0 if q == 0 else sA1, soA0 if q == 0 else soA1))
            out += [f"s_add_u32 {soA0}, {soA0}, {stA0}", f"s_add_u32 {soA1}, {soA1}, {stA1}"]
            continue
        out.append(f"s_add_u32 m0, {sW4k}, {lb}")
        if k == "t":
            if d[1] == 0: out += [dma(vX[q], sT0, 0, 1024 * q) for q in range(4)]
            else:
                out.append(dma(vW[0], sT1, 0)); out.append(f"s_add_u32 m0, {sW4k}, {lb + 1024}"); out.append(dma(vW[1], sT1, 0))
            continue
        if k == "wq" and d[1] == 0: out.append(f"s_lshl_b32 {soW}, {sH}, 8")
        vo, sr, so = {"wk": (vW, sWK, soW), "wv": (vW, sWVv, soW), "wq": (vW, sWQ, soW),
                      "c": (vC, sC, soC2 if d[-1] else soC1), "x": (vX, sX, soX2 if d[-1] else soX1)}[k]
        out += [dma(vo[q], sr, so, 1024 * q) for q in range(4)]
        if k in ("wv", "wq"): out.append(f"s_add_u32 {soW}, {soW}, {64 * 8192}")
        if k in ("c", "x"): out.append(f"s_add_u32 {so}, {so}, 128")
    return out

def k1_prologue(code_bytes):
    t = [V(64 + k) for k in range(16)]
    st = Xf[1]
    p = []
    p += [f"s_load_dwordx2 {sC[0:2]}, s[0:1], 32", f"s_load_dwordx2 {sWK[0:2]}, s[0:1], 48", f"s_load_dwordx2 {sWVv[0:2]}, s[0:1], 56",
          f"s_load_dwordx2 {sX[0:2]}, s[0:1], 0", f"s_load_dwordx2 {sWQ[0:2]}, s[0:1], 40", f"s_load_dwordx2 {sPt}, s[0:1], 8",
          f"s_load_dwordx2 {sPt2}, s[0:1], 72", f"s_load_dwordx2 {sT0[0:2]}, s[0:1], 64", f"s_load_dwordx2 {sPt3}, s[0:1], 16",
          f"s_load_dwordx2 {sDBG[0:2]}, s[0:1], 88", f"s_load_dwordx2 {sWT[0:2]}, s[0:1], 96"]
    p += [f"v_lshrrev_b32 {t[0]}, 6, v0", f"v_and_b32 {vLane}, 63, v0", f"v_readfirstlane_b32 {sWV_}, {t[0]}",
          f"s_and_b32 {sH}, s2, 7", f"s_lshl_b32 {sH}, {sH}, 2", f"s_bfe_u32 {sT}, s2, 0x20003", f"s_add_u32 {sH}, {sH}, {sT}",
          f"s_lshr_b32 {sJ}, s2, 5", f"s_lshl_b32 {sW4k}, {sWV_}, 12"]
    p += srd(sC, 2048 * 1024) + srd(sWK, 512 * 8192) + srd(sWVv, 512 * 8192)
    p += [f"v_lshrrev_b32 {t[1]}, 3, {vLane}", f"v_and_b32 {t[2]}, 7, {vLane}", f"v_lshrrev_b32 {t[3]}, 1, {t[1]}",
          f"v_xor_b32 {t[2]}, {t[2]}, {t[3]}", f"v_lshlrev_b32 {t[2]}, 4, {t[2]}", f"v_xor_b32 {t[3]}, 64, {t[2]}",
          f"s_lshr_b32 {sT}, {sWV_}, 1", f"s_lshl_b32 {sCH128}, {sT}, 7", f"s_and_b32 {sT2}, {sWV_}, 1", f"s_lshl_b32 {sU}, {sT2}, 5",
          f"s_add_u32 {sU}, {sU}, {sCH128}", f"v_add_lshl_u32 {t[4]}, {t[1]}, {sU}, 10"]
    for q in range(4):
        p += [f"v_add_u32 {vC[q]}, {t[4]}, {t[2 + (q & 1)]}"] + ([f"v_add_u32 {vC[q]}, {q * 7168}, {vC[q]}"] if q else [])
    p += [f"v_lshrrev_b32 {t[5]}, 4, {vLane}", f"v_and_b32 {t[6]}, 15, {vLane}", f"v_lshlrev_b32 {t[7]}, 1, {t[5]}",
          f"v_xor_b32 {t[7]}, {t[7]}, {t[6]}", f"v_lshlrev_b32 {t[7]}, 4, {t[7]}", f"v_xor_b32 {t[8]}, 128, {t[7]}",
          f"s_lshl_b32 {sU}, {sWV_}, 4", f"v_add_lshl_u32 {t[9]}, {t[5]}, {sU}, 13"]
    for q in range(4):
        p += [f"v_add_u32 {vW[q]}, {t[9]}, {t[7 + (q >> 1)]}"] + ([f"v_add_u32 {vW[q]}, {q * (4 * 8192 - 1024)}, {vW[q]}"] if q else [])
    p += [f"s_lshl_b32 {soW}, {sH}, 8", f"s_lshl_b32 {soC1}, {sJ}, 18", f"s_add_u32 {soC2}, {soC1}, {64 * 1024}"]
    p += ["s_waitcnt lgkmcnt(0)"]
    pre = plain(p)
    for i in range(4):
        pre += plain([tagged(x, f"slot{i}") for x in slot_dmas(i)], pre)
    p = []
    p += [f"v_lshlrev_b32 {t[10]}, 7, v0"]
    pf = []
    for k in range((code_bytes + 32767) // 32768):
        pf += [f"v_min_u32 {t[11]}, {code_bytes - 4}, {t[10]}", f"GLOBAL_PF {t[12]}, {t[11]}", f"v_add_u32 {t[10]}, 0x8000, {t[10]}"]
    p += pf
    p += srd(sX, 2048 * 1152) + srd(sWQ, 576 * 8192) + srd(sT0, 4096 * 1152) + srd(sDBG, 256)
    p += [f"s_mul_i32 {sT}, {sH}, {HEADSZ}", f"s_add_u32 {sKV[0]}, {sWT[0]}, {sT}", f"s_addc_u32 {sKV[1]}, {sWT[1]}, 0"] + srd(sKV, HEADSZ)
    p += [f"s_add_u32 {sCTX[0]}, {sWT[0]}, {WS_CTX}", f"s_addc_u32 {sCTX[1]}, {sWT[1]}, 0"] + srd(sCTX, CTX_SZ)
    p += [f"s_add_u32 {sWT[0]}, {sWT[0]}, {WS_WT}", f"s_addc_u32 {sWT[1]}, {sWT[1]}, 0"] + srd(sWT, WT_SZ)
    p += [f"s_mul_i32 {sT}, {sH}, 36",
          f"s_cmp_eq_u32 {sWV_}, 3",
          f"s_cselect_b32 {sA0[0]}, {sX[0]}, {sPt[0]}", f"s_cselect_b32 {sA0[1]}, {sX[1]}, {sPt[1]}",
          f"s_cselect_b32 {sA0[2]}, {sX[2]}, {576 * 3456}", f"s_mov_b32 {sA0[3]}, 0x20000",
          f"s_cselect_b32 {soA0}, 0, {sT}", f"s_mov_b32 {sU}, 128", f"s_cselect_b32 {stA0}, {sU}, {64 * 3456}",
          f"s_cmp_eq_u32 {sWV_}, 2",
          f"s_cselect_b32 {sA1[0]}, {sPt2[0]}, {sA0[0]}", f"s_cselect_b32 {sA1[1]}, {sPt2[1]}, {sA0[1]}",
          f"s_cselect_b32 {sA1[2]}, 1152, {sA0[2]}", f"s_mov_b32 {sA1[3]}, 0x20000",
          f"s_cselect_b32 {soA1}, 0, {soA0}", f"s_cselect_b32 {stA1}, {sU}, {stA0}",
          f"s_cmp_eq_u32 {sWV_}, 0",
          f"s_cselect_b32 {sT1[0]}, {sT0[0]}, {sPt3[0]}", f"s_cselect_b32 {sT1[1]}, {sT0[1]}, {sPt3[1]}",
          f"s_cselect_b32 {sT1[2]}, {sT0[2]}, {576 * 1152}", f"s_mov_b32 {sT1[3]}, 0x20000"]
    p += [f"s_mul_i32 {soX1}, {sJ}, {128 * 1152}", f"s_sub_u32 {soX2}, {15 * 128 * 1152}, {soX1}"]
    p += [f"s_lshl_b32 {sK0}, {sJ}, 2", f"s_lshl1_add_u32 {sK0}, {sT2}, {sK0}", f"s_lshl_b32 {sK0}, {sK0}, 15",
          f"s_lshl_b32 {sU}, {sCH128}, 6", f"s_add_u32 {sV0}, {sK0}, {sU}", f"s_add_u32 {sV0}, {sV0}, {SLOT + 16384}",
          f"s_lshl_b32 {sU}, {sCH128}, 4", f"s_add_u32 {sK0}, {sK0}, {sU}"]
    p += [f"v_lshlrev_b32 {vL16}, 4, {vLane}"]
    p += [f"s_lshl_b32 {sU}, {sWV_}, 5", f"v_add_u32 {t[4]}, {sU}, {t[1]}", f"v_mul_u32_u24 {t[4]}, 1152, {t[4]}"]
    for q in range(4):
        p += [f"v_add_u32 {vX[q]}, {t[4]}, {t[2 + (q & 1)]}"] + ([f"v_add_u32 {vX[q]}, {q * (8 * 1152 - 1024)}, {vX[q]}"] if q else [])
    g, l15 = t[5], t[6]
    p += [f"v_lshrrev_b32 {t[7]}, 1, {l15}", f"v_xor_b32 {t[7]}, {t[7]}, {g}", f"v_lshlrev_b32 {t[7]}, 4, {t[7]}",
          f"v_lshl_add_u32 {t[7]}, {l15}, 7, {t[7]}", f"v_xor_b32 {t[8]}, 64, {t[7]}"]
    p += [f"s_lshl_b32 {sU}, {sT2}, 13"] + [f"v_add_u32 {rC[k]}, {sU}, {t[7 + k]}" for k in range(2)]
    p += [f"s_lshl_b32 {sU}, {sWV_}, 11"] + [f"v_add_u32 {rX[k]}, {sU}, {t[7 + k]}" for k in range(2)]
    p += [f"s_lshl_b32 {sU}, {sT2}, 11", f"s_add_u32 {sU}, {sU}, 12288"] + [f"v_add_u32 {st[4 + k]}, {sU}, {t[7 + k]}" for k in range(2)]
    r_, c_, row, f_ = t[9], t[10], t[11], t[13]
    p += [f"v_bfe_u32 {r_}, {vLane}, 2, 2", f"v_and_b32 {c_}, 3, {vLane}", f"v_lshl_add_u32 {row}, {g}, 3, {r_}",
          f"v_and_b32 {f_}, 1, {g}", f"v_lshl_add_u32 {f_}, {f_}, 2, {r_}", f"v_lshlrev_b32 {f_}, 5, {f_}",
          f"v_lshl_add_u32 {f_}, {c_}, 3, {f_}", f"v_lshl_add_u32 {f_}, {row}, 8, {f_}"]
    for cb in range(8):
        p += [f"v_xor_b32 {rW[cb]}, {32 * cb}, {f_}"] + ([f"v_xor_b32 {rW[cb]}, {sCH128}, {rW[cb]}"] if cb < 4 else [])
    p += [f"v_mul_u32_u24 {row}, 144, {row}", f"s_lshr_b32 {sU}, {sCH128}, 4"]
    for sl in range(4):
        gm = t[14]
        if sl == 0: p += [f"v_add_u32 {gm}, {sU}, {c_}"]
        elif sl == 2: p += [f"v_subrev_u32 {gm}, {sU}, {c_}", f"v_add_u32 {gm}, 8, {gm}"]
        else: p += [f"v_add_u32 {gm}, {4 * sl}, {c_}"]
        p += [f"v_mul_u32_u24 {t[15]}, 52, {gm}", f"v_lshrrev_b32 {t[15]}, 8, {t[15]}", f"v_add_u32 {gm}, {gm}, {t[15]}",
              f"v_lshl_add_u32 {rA[sl]}, {gm}, 3, {row}"]
    p += [f"v_lshlrev_b32 {rG}, 4, {g}", f"v_add_u32 {rG}, 9216, {rG}"]
    p += [f"s_mov_b32 {sGm[0]}, 0x10001000", f"s_mov_b32 {sGm[1]}, 0x10001000"]
    p += [f"s_lshl_b32 {sU}, {sJ}, 7", f"s_sub_u32 {sU}, {sU}, 16", f"s_max_i32 {sU}, {sU}, 0",
          f"s_lshl_b32 {sU2}, {sJ}, 7", f"s_sub_u32 {sU2}, {15 * 128 - 16}, {sU2}"]
    e, rw, ps, sg_ = t[9], t[10], t[11], t[13]
    for q in range(4):
        p += [f"s_lshl_b32 {sT}, {sWV_}, 8", f"s_add_u32 {sT}, {sT}, {64 * q}", f"v_add_u32 {e}, {sT}, {vLane}",
              f"v_mul_u32_u24 {rw}, 7282, {e}", f"v_lshrrev_b32 {rw}, 16, {rw}",
              f"v_mul_u32_u24 {ps}, 9, {rw}", f"v_sub_u32 {ps}, {e}, {ps}",
              f"v_mul_u32_u24 {sg_}, 11, {ps}", f"v_lshrrev_b32 {sg_}, 5, {sg_}",
              f"v_mul_u32_u24 {e}, 3, {sg_}", f"v_sub_u32 {ps}, {ps}, {e}",
              f"v_add_u32 {sg_}, 1, {sg_}", f"v_cmp_eq_u32 vcc, 3, {sg_}", f"v_cndmask_b32 {sg_}, {sg_}, 0, vcc" if False else f"v_cndmask_b32_e64 {sg_}, {sg_}, 0, vcc",
              f"v_mul_u32_u24 {sg_}, 1152, {sg_}", f"v_mul_u32_u24 {rw}, 3456, {rw}", f"v_lshl_add_u32 {ps}, {ps}, 4, {sg_}",
              f"v_add_u32 {st[q]}, {rw}, {ps}"]
        p += [f"v_add_u32 {e}, {sU if q < 2 else sU2}, {t[1]}"] + ([f"v_add_u32 {e}, 8, {e}"] if q & 1 else []) + \
             [f"v_mul_u32_u24 {e}, 1152, {e}", f"v_add_u32 {e}, {e}, {t[2 + (q & 1)]}",
              f"s_cmp_eq_u32 {sWV_}, 3", f"s_cselect_b64 vcc, -1, 0", f"v_cndmask_b32 {st[q]}, {st[q]}, {e}, vcc"]
        if q >= 1:
            p += [f"v_mov_b32 {e}, {OOB}"]
            if q == 1: p += [f"v_cmp_gt_u32 vcc, 8, {vLane}", f"v_cndmask_b32 {e}, {e}, {vL16}, vcc"]
            p += [f"s_cmp_eq_u32 {sWV_}, 2", f"s_cselect_b64 vcc, -1, 0", f"v_cndmask_b32 {st[q]}, {st[q]}, {e}, vcc"]
    p += [f"s_mov_b32 {sScale}, {fbits(128 ** -0.5 * LOG2E):#x}", f"s_mov_b64 {sFail}, 0", f"s_mov_b32 {sRedo}, 0"]
    p = [x.replace("GLOBAL_PF", "buffer_load_dword").replace(f"{t[12]}, {t[11]}", f"{t[12]}, {t[11]}, {sC}, 0 offen ;PF") if x.startswith("GLOBAL_PF") else x for x in p]
    return pre + plain(p, pre)

def k1_gemms(prev):
    Rg = Region("gemm"); W = Win()
    st = Xf[1]
    LEAD = 11
    wfn = [0]
    def bar(i, pos, n_gaps):
        Rg([f"WAITVM slot{i + 1}", "s_barrier"], at=pos, by=pos, pin=True, rd=[('x', f"iss{i + 3}"), ('x', f"rd{i - 1}")], wr=[('x', f"bar{i}")])
        if i + 4 > 34: return
        if i + 4 == 18:
            for q in range(4): Rg(f"v_mov_b32 {vA[q]}, {st[q]}")
        if i + 4 == 33: t_setup()
        ds = slot_dmas(i + 4); nd = sum(1 for x in ds if x.startswith("buffer")); k = 0
        for x in ds:
            isd = x.startswith("buffer")
            a = pos + 1 + (k * (n_gaps - 4)) // nd
            Rg(x, at=a if isd else a - 1, by=a + 2, tag=f"slot{i + 4}", rd=[('x', f"bar{i}")] if isd else [], wr=[('x', f"iss{i + 4}")] if isd else [])
            k += isd
    def rdk(i): return dict(rd=[('x', f"bar{i - 1}")], wr=[])
    def w_reads(i, reg, base, second, kstep):
        f = Wf[wfn[0] % 3]; wfn[0] += 1
        for ks in range(2):
            for hf in range(2):
                o = W.off(Rg, reg, base + ks * kstep + hf * second)
                Rg(f"ds_read_b64_tr_b16 {f.sub(4 * ks + 2 * hf, 2)}, {reg} offset:{o}", **rdk(i))
        return f
    def act_reads(i, lst, g0, g1):
        for n, (d, reg, ad) in enumerate(lst):
            a = g0 + (n * (g1 - g0)) // len(lst)
            o = W.off(Rg, reg, ad, at=a - 1, by=a)
            Rg(f"ds_read_b128 {d}, {reg} offset:{o}", at=a, by=a + 2, rd=[('x', f"bar{i - 1}")] if i else [('x', "bar0")])
    def c_list(base, buf, part): return [(Cf(buf, 4 * part + rl, ks), rC[ks], base + 2048 * rl) for rl in range(4) for ks in range(2)]
    def x_list(base, buf, part): return [(Xf[buf].sub(16 * part + 8 * u + 4 * ks, 4), rX[ks], base + 8192 * u) for u in range(2) for ks in range(2)]
    Xfr = lambda buf, qb, ks: Xf[buf].sub(8 * qb + 4 * ks, 4)

    tA, tB = W.__class__, None
    rT = (rA[0], )
    def t_setup():
        a, b, c = tmp[0], tmp[1], tmp[2]
        Rg(f"s_lshr_b32 {sT}, {sJ}, 1"); Rg(f"s_lshl2_add_u32 {sT}, {sH}, {sT}")
        Rg(f"s_mul_i32 {sU}, {sT}, {32 * 1152}"); Rg(f"s_and_b32 {sT2}, {sJ}, 1"); Rg(f"s_mul_i32 {sU2}, {sT2}, 576")
        Rg(f"s_add_u32 {sU}, {sU}, {sU2}")
        Rg(f"s_mul_i32 {sK0}, {sT}, {WT_KS}"); Rg(f"s_mul_i32 {sU2}, {sT2}, {18 * 1024}"); Rg(f"s_add_u32 {sK0}, {sK0}, {sU2}")
        Rg(f"s_add_u32 {sV0}, {sK0}, 16384"); Rg(f"s_add_u32 {sK0}, {sK0}, {sW4k}")
        Rg(f"v_lshrrev_b32 {a}, 7, {vL16}"); Rg(f"v_mul_u32_u24 {a}, 1152, {a}"); Rg(f"v_and_b32 {b}, 0x70, {vL16}")
        Rg(f"s_lshr_b32 {sU2}, {sW4k}, 5"); Rg(f"s_add_u32 {sU2}, {sU2}, {sU}")
        Rg(f"v_add3_u32 {a}, {a}, {b}, {sU2}")
        for q in range(4): Rg(f"v_add_u32 {vX[q]}, {q * (8 * 1152 - 1024)}, {a}")
    def t_setup2():
        a, b, c, d = tmp[0], tmp[1], tmp[2], tmp[3]
        Rg(f"s_mul_hi_u32 {sT}, s2, {(2 ** 32 + 5) // 6}")
        Rg(f"s_mul_i32 {sT2}, {sT}, 6"); Rg(f"s_sub_u32 {sT2}, s2, {sT2}"); Rg(f"s_mul_i32 {sT2}, {sT2}, 6")
        Rg(f"s_lshl1_add_u32 {sT2}, {sWV_}, {sT2}"); Rg(f"s_sub_u32 {sT2}, {sT2}, 2")
        Rg(f"s_add_u32 {sSt}, {sT}, 128"); Rg(f"s_mul_i32 {sSt}, {sSt}, 36"); Rg(f"s_add_u32 {sSt}, {sSt}, {sT2}"); Rg(f"s_lshl_b32 {sSt}, {sSt}, 10")
        Rg([f"s_cmp_eq_u32 {sWV_}, 0", f"s_cselect_b32 {sV0}, {sV0}, {sSt}"])
        Rg(f"s_lshl_b32 {sT2}, {sT2}, 5")
        Rg(f"v_lshrrev_b32 {a}, 8, {vL16}"); Rg(f"v_lshl_add_u32 {a}, {sT}, 2, {a}")
        Rg(f"v_bfe_u32 {b}, {vL16}, 6, 2")
        for q in range(2):
            Rg(f"v_lshrrev_b32 {c}, 1, {a}"); Rg(f"v_mul_u32_u24 {c}, 18, {c}"); Rg(f"v_and_b32 {d}, 1, {a}")
            Rg(f"v_lshl_add_u32 {c}, {d}, 3, {c}"); Rg(f"v_add3_u32 {c}, {c}, {b}, {4 * q}")
            Rg(f"v_lshrrev_b32 {d}, 1, {b}"); Rg(f"v_lshl_add_u32 {d}, {a}, 2, {d}"); Rg(f"v_add_u32 {d}, {(2 * q - 256) & 0xffffffff:#x}, {d}")
            Rg(f"v_mul_u32_u24 {d}, 18, {d}"); Rg(f"v_and_b32 {vW[q]}, 1, {b}"); Rg(f"v_add3_u32 {d}, {d}, {vW[q]}, 16")
            Rg(f"v_cmp_gt_u32 vcc, 64, {a}"); Rg(f"v_cndmask_b32 {c}, {d}, {c}, vcc")
            Rg(f"v_mul_u32_u24 {c}, 1152, {c}"); Rg(f"v_add_u32 {c}, {sT2}, {c}")
            Rg(f"v_lshrrev_b32 {d}, 6, {vL16}"); Rg(f"v_mul_u32_u24 {d}, 1152, {d}"); Rg(f"v_add_u32 {d}, {sU}, {d}")
            Rg(f"v_add_u32 {d}, {512 + q * 16 * 1152}, {d}")
            Rg([f"s_cmp_eq_u32 {sWV_}, 0", f"s_cselect_b64 vcc, -1, 0"]); Rg(f"v_cndmask_b32 {c}, {c}, {d}, vcc")
            Rg(f"v_and_b32 {d}, 0x30, {vL16}"); Rg(f"v_add_u32 {vW[q]}, {c}, {d}")
        Rg(f"v_lshrrev_b32 {a}, 6, {vL16}"); Rg(f"v_bfe_u32 {b}, {vL16}, 4, 2"); Rg(f"v_lshlrev_b32 {b}, 3, {b}"); Rg(f"v_add_u32 {b}, {sW4k}, {b}")
        Rg(f"v_lshl_add_u32 {vW[2]}, {a}, 7, {b}"); Rg(f"v_lshl_add_u32 {vW[3]}, {a}, 6, {b}")
    def t_work(i, part, g0):
        base = (i % 5) * SLOT + 16384
        for u in range(4 if part == 0 else 2):
            d = tmp.sub(4 * (u & 1), 4); reg = vW[2 + part]
            for hf in range(2):
                o = W.off(Rg, reg, base + 32 * u + hf * (2048 if part == 0 else 1024))
                Rg(f"ds_read_b64_tr_b16 {d.sub(2 * hf, 2)}, {reg} offset:{o}", at=g0 + 10 * u, **rdk(i))
            Rg(f"buffer_store_dwordx4 {d}, {vL16}, {sWT}, {sK0 if part == 0 else sV0} offen offset:{1024 * u}", at=g0 + 10 * u + 7)

    def background(f):
        def g(*a):
            Rg.bg = True; f(*a); Rg.bg = False
        return g
    t_setup, t_setup2, t_work = background(t_setup), background(t_setup2), background(t_work)
    bar(0, -1, 54)
    act_reads(0, c_list(0, 0, 0) + c_list(16384, 0, 1), -1, -1)
    stores = []
    def k_pack(pp, rb):
        n = 2 * rb + pp; lo, hi = Kacc(2 * pp, rb), Kacc(2 * pp + 1, rb)
        for e, (x, y) in enumerate([(lo[0], lo[1]), (lo[2], lo[3]), (hi[0], hi[1]), (hi[2], hi[3])]):
            Rg(f"v_cvt_pk_bf16_f32 {x}, {x}, {y}"); Rg(f"v_accvgpr_write_b32 {Kpk(n)[e]}, {x}")
    def k_store(rb, at):
        Rg(f"s_add_u32 {sSt}, {sK0}, {(rb >> 2) * SLOT + (rb & 3) * 4096}", at=at - 1)
        for pp in range(2):
            Rg(f"buffer_store_dwordx4 {Kpk(2 * rb + pp)}, {vL16}, {sKV}, {sSt} offen offset:{1024 * pp} {Opt.st_flags}", at=at + 12 * pp, by=at + 12 * pp + 3, tag="kv")
    vn = [0]
    def v_store(cb, p_, at):
        d = tmp.sub(4 * (vn[0] & 1), 4); vn[0] += 1
        src = Ac(Vacc(cb, 2 * p_).i, 8)
        for e in range(4):
            t2 = vLane
            Rg(f"v_accvgpr_read_b32 {d[e]}, {src[2 * e]}", at=at - 10); Rg(f"v_accvgpr_read_b32 {t2}, {src[2 * e + 1]}", at=at - 10)
            Rg(f"v_cvt_pk_bf16_f32 {d[e]}, {d[e]}, {t2}", at=at - 10)
        Rg(f"s_add_u32 {sSt}, {sV0}, {(p_ >> 1) * SLOT + cb * 2048 + (p_ & 1) * 1024}", at=at - 1)
        Rg(f"buffer_store_dwordx4 {d}, {vL16}, {sKV}, {sSt} offen {Opt.st_flags}", at=at, by=at + 3, tag="kv")
    k_pack, k_store, v_store = background(k_pack), background(k_store), background(v_store)
    for s in range(8):
        buf = s & 1
        for hi in range(2):
            i = 1 + 2 * s + hi; base = (i % 5) * SLOT; g0 = Rg.nm
            if s < 7: act_reads(i, c_list(base + 16384, buf ^ 1, hi), g0 + 2, g0 + 46)
            else: act_reads(i, x_list(base + 16384, 0, hi), g0 + 2, g0 + 46)
            for cb in range(4):
                f = w_reads(i, rW[cb], base, 1024, 8192)
                if s == 7 and hi: Rg(f"v_xor_b32 {rW[cb]}, {sCH128}, {rW[cb]}")
                for rb in range(8):
                    for ks in range(2):
                        acc = Vacc(cb, rb) if hi else Kacc(cb, rb)
                        a, b = (Cf(buf, rb, ks), f.sub(4 * ks, 4)) if hi else (f.sub(4 * ks, 4), Cf(buf, rb, ks))
                        Rg(f"{MF} {acc}, {a}, {b}, {0 if (s == 0 and ks == 0) else acc}")
                if s == 7 and not hi and cb & 1:
                    for rb in range(8): k_pack(cb >> 1, rb)
                if s == 7 and hi and cb == 0:
                    v_store(0, 0, Rg.nm + 30); v_store(0, 1, Rg.nm + 46)
                if cb == 2: bar(i, g0 + 64 - LEAD, 64)
            if s == 6 and hi:
                for k in range(2): Rg(f"v_mov_b32 {rH[k]}, {st[4 + k]}"); W.w[rH[k].i] = 0
    p2 = Rg.nm
    work = [("k", rb) for rb in range(8)] + [("v", cb, p_) for cb in range(4) for p_ in range(4) if not (cb == 0 and p_ < 2)]
    t_at = p2 + 10; sched_st = []
    for wk in work:
        sched_st.append((t_at, wk)); t_at += 24 if wk[0] == "k" else 14
    zero = [Oacc(db, qb)[e] for db in range(8) for qb in range(4) for e in range(4)] + [Lacc(qb)[e] for qb in range(4) for e in range(4)]
    signalled = False
    for s in range(9):
        buf = s & 1
        for hi in range(2):
            i = 17 + 2 * s + hi; base = (i % 5) * SLOT; g0 = Rg.nm; n = 36 if hi else 64
            while sched_st and sched_st[0][0] < g0 + n:
                at, wk = sched_st.pop(0)
                if wk[0] == "k": k_store(wk[1], at)
                else: v_store(wk[1], wk[2], at)
                last_store_slot = i
            if s < 8: act_reads(i, x_list(base + 16384, buf ^ 1, hi), g0 + 2, g0 + n - 18)
            else: t_work(i, hi, g0 + 1)
            if s in (5, 6, 7) and not hi:
                for k, z in enumerate(zero[48 * (s - 5):48 * (s - 4)]): Rg(f"v_accvgpr_write_b32 {z}, 0", at=g0 + 2 * k, by=g0 + 2 * k + 8, bg=True)
            if s == 7 and hi:
                Rg(f"v_mov_b32 {vLane}, 0x3f803f80")
                for e in range(4): Rg(f"v_accvgpr_write_b32 {ones[e]}, {vLane}")
            if hi:
                for ks in range(2):
                    o = W.off(Rg, rH[ks], base); Rg(f"ds_read_b128 {Hf(ks)}, {rH[ks]} offset:{o}", **rdk(i))
            for cb in range(4 if hi else 8):
                f = w_reads(i, rA[cb], base, 576, 4608) if hi else w_reads(i, rW[cb], base, 1024, 8192)
                if hi and cb == 3:
                    for ks in range(2):
                        o = W.off(Rg, rG, base + 64 * ks)
                        Rg([f"s_mov_b64 exec, {sGm}", f"ds_read_b128 {f.sub(4 * ks, 4)}, {rG} offset:{o}", "s_mov_b64 exec, -1"], **rdk(i))
                for qb in range(4):
                    for ks in range(2):
                        acc = Aacc(cb, qb) if hi else Qacc(cb, qb)
                        Rg(f"{MF} {acc}, {f.sub(4 * ks, 4)}, {Xfr(buf, qb, ks)}, {0 if (s == 0 and ks == 0) else acc}")
                if hi and cb < 2:
                    for ks in range(2):
                        Rg(f"{MF} {Hacc(cb)}, {f.sub(4 * ks, 4)}, {Hf(ks)}, {0 if (s == 0 and ks == 0) else Hacc(cb)}")
                if s == 8 and not hi:
                    for qb in range(4):
                        for e in range(4): Rg(f"v_mul_f32 {Qacc(cb, qb)[e]}, {sScale}, {Qacc(cb, qb)[e]}", bg=True)
                        if cb & 1:
                            lo, h_ = Qacc(cb - 1, qb), Qacc(cb, qb)
                            for e, (x, y) in enumerate([(lo[0], lo[1]), (lo[2], lo[3]), (h_[0], h_[1]), (h_[2], h_[3])]):
                                Rg(f"v_cvt_pk_bf16_f32 {lo[e]}, {x}, {y}", bg=True)
                if cb == (1 if hi else 5) and i < 34:
                    bar(i, g0 + n - LEAD, 64 if hi else 36)
                    if i + 4 == 33: t_setup2()
                    if not sched_st and not signalled and i >= last_store_slot + 4:
                        Rg(f"v_cmp_eq_u32 vcc, {sW4k}, {vL16}"); Rg(f"v_mov_b32 {tmp[0]}, {OOB}"); Rg(f"v_cndmask_b32_e64 {tmp[0]}, {tmp[0]}, 0, vcc")
                        Rg(f"v_mov_b32 {tmp[1]}, 1"); Rg(f"s_lshl_b32 {sSt}, {sH}, 3")
                        Rg(f"buffer_atomic_add {tmp[1]}, {tmp[0]}, {sDBG}, {sSt} offen sc1", rd=[('x', f"bar{i}")], by=g0 + n, tag="sig")
                        signalled = True; sig_slot = i
    assert signalled
    out = Rg.schedule(prev, Opt.verbose)
    idx_last_kv = max(n for n, x in enumerate(out) if getattr(x, "target", None) == "kv" and x.cls == "G")
    idx_cov = max(n for n, x in enumerate(out) if getattr(x, "target", None) == f"slot{sig_slot + 1}" and x.cls == "G")
    assert idx_last_kv < idx_cov
    return out

STG = 3 * SLOT
def att_dmas(n_static_pos=None):
    o = [f"s_add_u32 m0, {sWr}, {sW8k}"] + [dma(vL16, sKV, sSrc, 1024 * q) for q in range(4)]
    o += [f"s_add_u32 {sSrc2}, {sSrc}, 4096", f"s_add_u32 m0, m0, 4096"] + [dma(vL16, sKV, sSrc2, 1024 * q) for q in range(4)]
    o += [f"s_add_u32 {sSrc}, {sSrc}, {SLOT}"]
    return o

def k1_transition(A, prev):
    p = []
    a, b, c, d = V(2), V(3), V(8), V(9)
    sa = V(10, 4); sh_ = V(14, 2)
    p += [f"v_bfe_u32 {a}, {vL16}, 4, 4", f"v_lshrrev_b32 {b}, 8, {vL16}", f"s_lshl_b32 {sU}, {sWV_}, 4", f"s_add_u32 {sU}, {sU}, 16",
          f"v_add_u32 {c}, {sU}, {a}", f"v_mul_u32_u24 {c}, 144, {c}", f"v_add_u32 {c}, {STG}, {c}", f"v_lshl_add_u32 {sa[1]}, {b}, 3, {c}",
          f"s_lshr_b32 {sU}, {sCH128}, 1",
          f"v_add_u32 {sa[0]}, {sU}, {sa[1]}", f"v_subrev_u32 {sa[2]}, {sU}, {sa[1]}",
          f"s_and_b32 {sU2}, {sWV_}, 1", f"s_mul_i32 {sU2}, {sU2}, {144 * 144}", f"s_add_u32 {sU2}, {sU2}, {STG}",
          f"v_mul_u32_u24 {d}, 144, {a}", f"v_lshl_add_u32 {d}, {b}, 3, {d}", f"v_add_u32 {sh_[1]}, {sU2}, {d}", f"v_add_u32 {sh_[0]}, {sU}, {sh_[1]}",
          f"v_add_u32 {sa[3]}, 120, {c}"]
    p += [f"s_lshl_b32 {sSt}, {sH}, 3", f"v_mov_b32 {a}, 0"]
    pre = plain(p, prev); A(texts(pre))
    A(f"s_mov_b32 {sCnt}, 0")
    A.label("K1_POLL")
    A([f"buffer_load_dword {b}, {a}, {sDBG}, {sSt} offen sc1", "s_waitcnt vmcnt(0)", f"v_readfirstlane_b32 {sT}, {b}",
       f"s_add_u32 {sCnt}, {sCnt}, 1", f"s_cmp_ge_u32 {sCnt}, 0x40000", "s_cbranch_scc1 K1_POLLED",
       f"s_cmp_ge_u32 {sT}, 8", "s_cbranch_scc1 K1_POLLED", "s_sleep 4", "s_branch K1_POLL"])
    A.label("K1_POLLED")
    p = ["buffer_inv sc1"]
    p += [f"s_lshl_b32 {sW8k}, {sWV_}, 13", f"s_sub_u32 {sT}, 33, {sJ}", f"s_sub_u32 {sT}, {sT}, {sJ}", f"s_lshl_b32 {sKV[2]}, {sT}, 15",
          f"s_mov_b32 {sSrc}, {sW8k}", f"s_mov_b32 {sWr}, 0", "s_waitcnt lgkmcnt(0)", "s_barrier"]
    for n in range(3): p += att_dmas() + [f"s_add_u32 {sWr}, {sWr}, {SLOT}"]
    t4 = [V(16 + 4 * k, 4) for k in range(4)]; n = 0
    items = [(Aacc(sl, qb), sa[sl if sl != 3 else 1], 32 * sl + ((qb >> 1) * 144 + (qb & 1) * 64) * 144) for sl in range(4) for qb in range(4)]
    items += [(Hacc(sl), sh_[sl], 32 * sl) for sl in range(2)]
    for acc, ad, off in items:
        t = t4[n & 3]; n += 1
        p += [f"v_accvgpr_read_b32 {t[e]}, {acc[e]}" for e in range(4)]
        p += [f"v_cvt_pk_bf16_f32 {t[0]}, {t[0]}, {t[1]}", f"v_cvt_pk_bf16_f32 {t[1]}, {t[2]}, {t[3]}"]
        w_ = f"ds_write_b64 {ad}, {t[0:2]} offset:{off}"
        if acc.i == Hacc(1).i:
            p += [f"s_cmp_eq_u32 {sCH128}, 0", "s_cselect_b64 exec, -1, 0", w_, "s_mov_b64 exec, -1"]
        else: p += [w_]
    ra = V(2); pos = V(3); so_ = V(8)
    p += [f"s_and_b32 {sU}, {sWV_}, 1", f"s_lshl_b32 {sU}, {sU}, 6", f"v_lshrrev_b32 {pos}, 4, {vL16}", f"v_add_u32 {pos}, {sU}, {pos}",
          f"s_lshr_b32 {sU2}, {sWV_}, 1", f"s_mul_i32 {sT}, {sU2}, 144", f"s_add_u32 {sT}, {sT}, 2",
          f"v_add_u32 {ra}, {sT}, {pos}", f"v_mul_u32_u24 {ra}, 144, {ra}", f"v_add_u32 {ra}, {STG}, {ra}",
          f"s_sub_u32 {sT}, 15, {sJ}", f"s_cmp_eq_u32 {sU2}, 0", f"s_cselect_b32 {sT}, {sJ}, {sT}", f"s_lshl_b32 {sT}, {sT}, 7",
          f"v_add_u32 {pos}, {sT}, {pos}", f"v_lshrrev_b32 {so_}, 4, {pos}", f"s_mov_b32 {sU}, {CTX_RB}", f"v_mul_lo_u32 {so_}, {so_}, {sU}",
          f"v_and_b32 {d}, 0xf0, {vL16}", f"v_add_u32 {so_}, {so_}, {d}"]
    p += ["s_waitcnt lgkmcnt(0)", "s_barrier"]
    kv = lambda w: V(16 + 12 * w, 12); q = V(112, 12); lg = V(144, 8); ph = V(152, 8); o = [V(176 + e) for e in range(16)] + [V(208), V(209)]
    gl = V(124, 4)
    for u in range(3): p.append(f"ds_read_b128 {q.sub(4 * u, 4)}, {ra} offset:{14 * 144 + 80 + 16 * u}")
    for qb in range(4): p.append(f"ds_read_b32 {gl[qb]}, {sa[3]} offset:{((qb >> 1) * 144 + (qb & 1) * 64) * 144}")
    for w in range(8):
        for u in range(3): p.append(f"ds_read_b128 {kv(w).sub(4 * u, 4)}, {ra} offset:{(14 - 2 * w) * 144 + 16 * u}")
    for w in range(8): p.append(f"v_mov_b32 {lg[w]}, 0")
    for w0 in (0, 4):
        for e in range(9):
            for w in range(w0, w0 + 4): p.append(f"v_dot2c_f32_bf16 {lg[w]}, {q[e]}, {kv(w)[e]}")
        for w in range(w0, w0 + 4):
            for u in range(2): p.append(f"ds_read_b128 {kv(w).sub(4 * u, 4)}, {ra} offset:{(14 - 2 * w) * 144 + 48 + 16 * u}")
    gg = V(9); mx = V(10); sm = V(11)
    p += [f"s_mov_b32 {sU}, {fbits(-LOG2E):#x}", f"s_mov_b32 {sU2}, {fbits(LOG2E):#x}", f"s_mov_b32 {sT}, {fbits(18 ** -0.5 * LOG2E):#x}",
          f"v_lshlrev_b32 {gg}, 16, {q[10]}", f"v_mul_f32 {gg}, {sU}, {gg}", f"v_exp_f32 {gg}, {gg}"]
    for qb in range(4):
        p += [f"v_lshlrev_b32 {omg[qb]}, 16, {gl[qb]}", f"v_mul_f32 {omg[qb]}, {sU2}, {omg[qb]}", f"v_exp_f32 {omg[qb]}, {omg[qb]}"]
    p += [f"v_add_f32 {gg}, 1.0, {gg}", f"v_rcp_f32 {gg}, {gg}"]
    for qb in range(4): p += [f"v_add_f32 {omg[qb]}, 1.0, {omg[qb]}", f"v_rcp_f32 {omg[qb]}, {omg[qb]}"]
    p += [f"v_mov_b32 {mx}, {NEGBIG:#x}"]
    for w in range(8):
        p += [f"v_mul_f32 {lg[w]}, {sT}, {lg[w]}"]
        if w: p += [f"v_cmp_le_u32 vcc, {2 * w}, {pos}", f"v_cndmask_b32 {lg[w]}, {mx}, {lg[w]}, vcc"]
    p += [f"v_max3_f32 {mx}, {lg[0]}, {lg[1]}, {lg[2]}", f"v_max3_f32 {sm}, {lg[3]}, {lg[4]}, {lg[5]}",
          f"v_max3_f32 {mx}, {mx}, {lg[6]}, {lg[7]}", f"v_max_f32 {mx}, {mx}, {sm}"]
    for w in range(8): p += [f"v_sub_f32 {lg[w]}, {lg[w]}, {mx}"]
    for w in range(8): p += [f"v_exp_f32 {lg[w]}, {lg[w]}"]
    p += [f"v_add_f32 {sm}, {lg[0]}, {lg[1]}"] + [f"v_add_f32 {sm}, {sm}, {lg[w]}" for w in range(2, 8)] + [f"v_rcp_f32 {sm}, {sm}"]
    for e in range(18): p.append(f"v_mov_b32 {o[e]}, 0")
    for w in range(8): p += [f"v_mul_f32 {lg[w]}, {lg[w]}, {sm}"]
    for w in range(8): p += [f"v_cvt_pk_bf16_f32 {ph[w]}, 0, {lg[w]}"]
    for w in range(8): p += [f"v_lshrrev_b32 {lg[w]}, 16, {ph[w]}"]
    for w in range(8):
        vp = [kv(w)[10], kv(w)[11]] + [kv(w)[e] for e in range(7)]
        for e in range(9): p += [f"v_dot2c_f32_bf16 {o[2 * e]}, {vp[e]}, {lg[w]}", f"v_dot2c_f32_bf16 {o[2 * e + 1]}, {vp[e]}, {ph[w]}"]
    for e in range(18): p.append(f"v_mul_f32 {o[e]}, {gg}, {o[e]}")
    pk = V(16, 12)
    for e in range(9): p.append(f"v_cvt_pk_bf16_f32 {pk[e]}, {o[2 * e]}, {o[2 * e + 1]}")
    p += [f"s_lshl_b32 {sU}, {sH}, 9", f"s_add_u32 {sU}, {sU}, {128 * 1024}",
          f"s_lshr_b32 {sU2}, {sH}, 2", f"s_lshl_b32 {sU2}, {sU2}, 8", f"s_and_b32 {sT}, {sH}, 3", f"s_lshl2_add_u32 {sU2}, {sT}, {sU2}",
          f"s_add_u32 {sU2}, {sU2}, {144 * 1024}",
          f"buffer_store_dwordx4 {pk[0:4]}, {so_}, {sCTX}, {sU} offen", f"buffer_store_dwordx4 {pk[4:8]}, {so_}, {sCTX}, {sU} offen offset:256",
          f"buffer_store_dword {pk[8]}, {so_}, {sCTX}, {sU2} offen"]
    tt = V(9)
    p += [f"v_bfe_u32 {tt}, {vL16}, 4, 4", f"v_lshrrev_b32 {mx}, 8, {vL16}", f"v_lshlrev_b32 {mx}, 2, {mx}", f"s_lshl_b32 {sU}, {sWV_}, 4",
          f"v_add_u32 {tt}, {sU}, {tt}", f"v_sub_u32 {tt}, {tt}, {mx}", f"v_mov_b32 {sm}, {NEGBIG:#x}"]
    for kb in range(4):
        for r in range(4): p += [f"v_cmp_le_i32 vcc, {16 * kb + r}, {tt}", f"v_cndmask_b32_e64 {bias(kb)[r]}, {sm}, 0, vcc"]
    p += [f"s_lshl3_add_u32 {sCtxS}, {sJ}, {sWV_}", f"s_mul_i32 {sCtxS}, {sCtxS}, {CTX_RB}",
          f"s_sub_u32 {sT}, 15, {sJ}", f"s_lshl3_add_u32 {sCtxL}, {sT}, {sWV_}", f"s_mul_i32 {sCtxL}, {sCtxL}, {CTX_RB}",
          f"s_lshl_b32 {sT}, {sH}, 12", f"s_add_u32 {sCtxS}, {sCtxS}, {sT}", f"s_add_u32 {sCtxL}, {sCtxL}, {sT}",
          f"s_mov_b32 {sBig}, {fbits(2.0 ** 100):#x}"]
    out, _ = fix_waits(plain(p))
    A(texts(out))

CARRY = [[('v', 256 + Kf(0, ks).i + e) for e in range(4)] for ks in range(4)] + [[('v', 256 + Vf(0, ks).i + e) for e in range(4)] for ks in range(2)]

def att_step(name, qk, pv, par, cq=None, cmode=None, nxt=True, tail_at=0):
    Rg = Region(name)
    chains = [(kb, qb) for kb in range(4) for qb in qk]
    pvs = [(db, qb) for db in range(8) for qb in pv]
    NM = 4 * len(chains) + 2 * len(pvs) + 2 * len(pv)
    def softmax(sr, kb, qb, pr, at=None, us=(0, 1)):
        d = Pf(pr, qb, kb >> 1)
        for u in us:
            for e in (2 * u, 2 * u + 1): Rg(f"v_exp_f32 {sr[e]}, {sr[e]}", at=at)
            Rg(f"v_cvt_pk_bf16_f32 {d[2 * (kb & 1) + u]}, {sr[2 * u]}, {sr[2 * u + 1]}")
    if pv: softmax(Sr(3), 3, pv[-1], par ^ 1, at=tail_at, us=(1,))
    if nxt:
        ds = att_dmas(); k = 0
        for x in ds:
            isd = x.startswith("buffer"); a = 1 + (k * (NM - 22)) // 8
            Rg(x, at=a if isd else a - 1, by=a + 3, wr=[('x', "iss")] if isd else []); k += isd
    seen_k, seen_v = {0}, {0}; np_ = 0; ring = (4 - len(chains)) % 4
    def pv_chain(db, qb):
        if db not in seen_v:
            seen_v.add(db)
            for ks in range(2): Rg(f"ds_read_b128 {Vf(db, ks)}, {vRd} offset:{16384 + (2 * db + ks) * 1024}", wr=[('x', "dsq")])
        for ks in range(2): Rg(f"{MF} {Oacc(db, qb)}, {Vf(db, ks)}, {Pf(par ^ 1, qb, ks)}, {Oacc(db, qb)}")
    for n, (kb, qb) in enumerate(chains):
        if kb not in seen_k:
            seen_k.add(kb)
            for ks in range(4): Rg(f"ds_read_b128 {Kf(kb, ks)}, {vRd} offset:{(4 * kb + ks) * 1024}", wr=[('x', "dsq")])
        c = negm(qb)
        if qb == cq:
            c = CA(kb)
            for e in range(4):
                if cmode == "mask": Rg(f"v_add_f32 {c[e]}, {bias(kb)[e]}, {negm(qb)[0]}")
                if cmode == "flag": Rg(f"v_fma_f32 {c[e]}, {bias(kb)[e]}, {sFlag}, {negm(qb)[0]}")
        sr = Sr(ring + n)
        for ks in range(4): Rg(f"{MF} {sr}, {Kf(kb, ks)}, {Qf(qb, ks)}, {c if ks == 0 else sr}")
        softmax(sr, kb, qb, par, us=(0, 1) if n < len(chains) - 1 else (0,))
        want = (len(pvs) * (n + 1)) // len(chains)
        while np_ < want: pv_chain(*pvs[np_]); np_ += 1
    while np_ < len(pvs): pv_chain(*pvs[np_]); np_ += 1
    for qb in pv:
        for ks in range(2): Rg(f"{MF} {Lacc(qb)}, {ones}, {Pf(par ^ 1, qb, ks)}, {Lacc(qb)}")
    if nxt:
        pos = NM - 13
        Rg([f"s_mov_b32 {sWr}, {sPrev}"], by=pos - 4); Rg([f"s_mov_b32 {sPrev}, {sRd}"], by=pos - 3)
        Rg([f"s_add_u32 {sRd}, {sRd}, {SLOT}"], by=pos - 2)
        Rg([f"s_cmp_eq_u32 {sRd}, {5 * SLOT}", f"s_cselect_b32 {sRd}, 0, {sRd}"], by=pos - 1)
        Rg(["s_waitcnt vmcnt(16)", "s_barrier"], at=pos, by=pos, pin=True, rd=[('x', "iss")], wr=[('x', "bar")])
        Rg(f"v_add_u32 {vRd}, {sRd}, {vL16}", by=pos)
        for ks in range(4): Rg(f"ds_read_b128 {Kf(0, ks)}, {vRd} offset:{ks * 1024}", rd=[('x', "bar")], wr=[('x', "dsq")], by=pos + 1 + ks)
        for ks in range(2): Rg(f"ds_read_b128 {Vf(0, ks)}, {vRd} offset:{16384 + ks * 1024}", rd=[('x', "bar")], wr=[('x', "dsq")], by=pos + 6 + ks)
    out = Rg.schedule(verbose=Opt.verbose)
    out, left = fix_waits(out, CARRY)
    assert left == [sorted(c) for c in CARRY][len(CARRY) - len(left):] or not nxt, (name, left)
    return texts(out)

def att_epilogue(qbs, sbase):
    p = ["s_nop 7"]
    for n, qb in enumerate(qbs):
        l, f = et[0], et[2:4]
        p += [f"v_accvgpr_read_b32 {l}, {Lacc(qb)[0]}", f"v_cmp_nle_f32 vcc, {l}, {sBig}" if False else f"v_cmp_nge_f32 vcc, {sBig}, {l}",
              f"v_rcp_f32 {f[0]}, {l}", f"s_or_b64 {sFail}, {sFail}, vcc", f"v_mul_f32 {f[0]}, {f[0]}, {omg[qb]}"]
        if n: p += [f"s_add_u32 {sSt}, {sbase}, {4 * CTX_RB}"]
        for pp in range(4):
            t = et.sub(4 + 8 * (pp & 1), 8)
            for e in range(8): p.append(f"v_accvgpr_read_b32 {t[e]}, {Oacc(2 * pp + (e >> 2), qb)[e & 3]}")
            for e in range(4): p.append(f"v_pk_mul_f32 {t.sub(2 * e, 2)}, {t.sub(2 * e, 2)}, {f} op_sel_hi:[1,0]")
            for e in range(4): p.append(f"v_cvt_pk_bf16_f32 {t[e]}, {t[2 * e]}, {t[2 * e + 1]}")
            p.append(f"buffer_store_dwordx4 {t[0:4]}, {vL16}, {sCTX}, {sSt if n else sbase} offen offset:{1024 * pp}")
    return texts(plain(p))

def rowmax_all(x, t):
    return [f"v_mov_b32 {t}, {x}", f"v_permlane32_swap_b32 {x}, {t}", f"v_max_f32 {x}, {x}, {t}",
            f"v_mov_b32 {t}, {x}", f"v_permlane16_swap_b32 {x}, {t}", f"v_max_f32 {x}, {x}, {t}"]

def k1_attention(A):
    A.label("K1_ATT")
    p = [f"s_mov_b32 {sRd}, 0", f"s_mov_b32 {sWr}, {3 * SLOT}", f"s_mov_b32 {sPrev}, {4 * SLOT}", f"s_cmp_eq_u32 {sJ}, 0", f"s_cselect_b32 {sFlag}, 1.0, 0", f"v_mov_b32 {vRd}, {vL16}",
         f"v_mov_b32 {et[3]}, 0", "s_waitcnt vmcnt(16) lgkmcnt(0)", "s_barrier"]
    p += [f"ds_read_b128 {Kf(0, ks)}, {vRd} offset:{ks * 1024}" for ks in range(4)]
    p += [f"ds_read_b128 {Vf(0, ks)}, {vRd} offset:{16384 + ks * 1024}" for ks in range(2)]
    p += [f"s_cmp_lg_u32 {sRedo}, 0"]
    A(texts(plain(p))); A("s_cbranch_scc1 K1_HAVEM")
    p = [f"v_mul_f32 {CA(0)[e]}, {sFlag}, {bias(0)[e]}" for e in range(4)] + ["s_waitcnt lgkmcnt(2)"]
    for qb in range(4):
        for ks in range(4): p.append(f"{MF} {Sr(qb)}, {Kf(0, ks)}, {Qf(qb, ks)}, {(CA(0) if qb == 0 else 0) if ks == 0 else Sr(qb)}")
    for qb in range(4):
        s_ = Sr(qb); p += [f"v_max3_f32 {s_[0]}, {s_[0]}, {s_[1]}, {s_[2]}", f"v_max_f32 {s_[0]}, {s_[0]}, {s_[3]}"]
    seqs = [rowmax_all(Sr(qb)[0], Sr(qb)[1]) for qb in range(4)]
    for k in range(6): p += [sq[k] for sq in seqs]
    for qb in range(4): p += [f"v_sub_f32 {negm(qb)[e]}, 0, {Sr(qb)[0]}" for e in range(4)]
    A(texts(plain(p)))
    A.label("K1_HAVEM")
    A(stamp("att_start"))
    A(att_step("E0", [0, 1, 2, 3], [], 0, cq=0, cmode="flag"))
    maskca = texts(plain(["s_nop 1"] + [f"v_add_f32 {CA(kb)[e]}, {CA(kb)[e]}, {bias(kb)[e]}" for kb in range(4) for e in range(4)] + ["s_nop 1"]))
    def loop(tag, qs, cq, tail0):
        A(f"s_cmp_eq_u32 {sCnt}, 0"); A(f"s_cbranch_scc1 K1_{tag}_END")
        A(".p2align 3"); A.label(f"K1_{tag}")
        A(att_step(tag + "o", qs, qs, 1, cq=cq, tail_at=tail0))
        A(f"s_cmp_eq_u32 {sCnt}, 1"); A(f"s_cbranch_scc1 K1_{tag}_MASK"); A.label(f"K1_{tag}_BACK")
        A(att_step(tag + "e", qs, qs, 0, cq=cq))
        A(f"s_sub_u32 {sCnt}, {sCnt}, 1"); A(f"s_cmp_lg_u32 {sCnt}, 0"); A(f"s_cbranch_scc1 K1_{tag}")
        A.label(f"K1_{tag}_END")
    A(f"s_mov_b32 {sCnt}, {sJ}")
    loop("LB", [0, 1, 2, 3], 0, 0)
    A(stamp("both_done"))
    A(att_step("O1", [1, 2, 3], [0, 1, 2, 3], 1, cq=1, cmode="mask"))
    A([f"s_cmp_eq_u32 {sJ}, 7", f"s_cselect_b32 {sFlag}, 1.0, 0"])
    A(att_step("E1", [2, 3], [1, 2, 3], 0, cq=2, cmode="flag"))
    A(att_epilogue([0, 1], sCtxS))
    A(stamp("short_done"))
    A([f"s_sub_u32 {sCnt}, 14, {sJ}", f"s_sub_u32 {sCnt}, {sCnt}, {sJ}"])
    loop("LS", [2, 3], 2, 0)
    A(stamp("single_done"))
    A(att_step("O2", [3], [2, 3], 1, cq=3, cmode="mask"))
    A(att_step("E2", [], [3], 0, nxt=False))
    A(att_epilogue([2, 3], sCtxL))
    A(stamp("att_done"))
    A(texts(plain([f"s_cmp_lg_u64 {sFail}, 0", f"s_cselect_b32 {sT}, 1, 0", f"v_mov_b32 {et[0]}, {sT}", f"s_lshl_b32 {sU}, {sWV_}, 2", f"v_mov_b32 {et[1]}, {sU}",
                   "s_waitcnt vmcnt(8)", "s_barrier", f"ds_write_b32 {et[1]}, {et[0]}", f"v_mov_b32 {et[1]}, 0", "s_waitcnt lgkmcnt(0)", "s_barrier",
                   f"ds_read_b128 {et[4:8]}, {et[1]}", "s_waitcnt lgkmcnt(0)", f"v_or3_b32 {et[4]}, {et[4]}, {et[5]}, {et[6]}",
                   f"v_or_b32 {et[4]}, {et[4]}, {et[7]}", f"v_readfirstlane_b32 {sT}, {et[4]}", f"s_andn2_b32 {sT}, {sT}, {sRedo}", f"s_cmp_lg_u32 {sT}, 0"])))
    A("s_cbranch_scc1 K1_REDO")
    if Opt.stamps:
        A([f"s_lshl_b32 {sT}, s2, 10", f"s_lshr_b32 {sU}, {sW4k}, 4", f"s_add_u32 {sT}, {sT}, {sU}", f"s_add_u32 {sT}, {sT}, {0x600000}", f"s_mov_b32 {sWT[2]}, {0x700000}",
           f"v_lshrrev_b32 {et[0]}, 2, {vL16}", f"buffer_store_dword v0, {et[0]}, {sWT}, {sT} offen"])
    A.label("K1_END")
    A("s_endpgm")
    for tag in ("LB", "LS"):
        A.label(f"K1_{tag}_MASK"); A(maskca); A(f"s_branch K1_{tag}_BACK")
    A.label("K1_REDO")
    thr = V(64, 4); mxs = V(68, 4); kf = V(72, 16); sc = V(88, 4); rel = V(92); nb = V(93)
    p = [f"s_mov_b32 {sRedo}, 1", "s_waitcnt vmcnt(0)", "s_barrier",
         f"v_lshrrev_b32 {rel}, 4, {vL16}", f"v_and_b32 {thr[0]}, 15, {rel}", f"v_lshrrev_b32 {rel}, 4, {rel}", f"v_lshlrev_b32 {rel}, 2, {rel}",
         f"v_sub_u32 {rel}, {thr[0]}, {rel}", f"s_lshl_b32 {sU}, {sWV_}, 4", f"v_add_u32 {rel}, {sU}, {rel}",
         f"s_lshl_b32 {sU}, {sJ}, 7", f"s_sub_u32 {sU2}, {15 * 128}, {sU}",
         f"v_add_u32 {thr[0]}, {sU}, {rel}", f"v_add_u32 {thr[1]}, 64, {thr[0]}", f"v_add_u32 {thr[2]}, {sU2}, {rel}", f"v_add_u32 {thr[3]}, 64, {thr[2]}",
         f"v_mov_b32 {nb}, {NEGBIG:#x}"] + [f"v_mov_b32 {mxs[qb]}, {nb}" for qb in range(4)]
    p += [f"s_mov_b32 {sCnt}, 0", f"s_add_u32 {sU2}, {sU2}, 128"]
    A(texts(plain(p)))
    A.label("K1_REDO_L")
    p = [f"s_lshr_b32 {sT}, {sCnt}, 6", f"s_lshl_b32 {sT}, {sT}, 15", f"s_bfe_u32 {sU}, {sCnt}, 0x20004", f"s_lshl_b32 {sU}, {sU}, 12", f"s_add_u32 {sT}, {sT}, {sU}"]
    p += [f"buffer_load_dwordx4 {kf.sub(4 * ks, 4)}, {vL16}, {sKV}, {sT} offen offset:{1024 * ks}" for ks in range(4)] + ["s_waitcnt vmcnt(0)"]
    for qb in range(4):
        p += [f"{MF} {sc}, {kf.sub(4 * ks, 4)}, {Qf(qb, ks)}, {0 if ks == 0 else sc}" for ks in range(4)]
        p += [f"v_subrev_u32 {rel}, {sCnt}, {thr[qb]}"]
        for e in range(4):
            p += [f"v_cmp_le_i32 vcc, {e}, {rel}", f"v_cndmask_b32 {sc[e]}, {nb}, {sc[e]}, vcc", f"v_max_f32 {mxs[qb]}, {mxs[qb]}, {sc[e]}"]
    p += [f"s_add_u32 {sCnt}, {sCnt}, 16", f"s_cmp_lt_u32 {sCnt}, {sU2}"]
    A(texts(plain(p))); A("s_cbranch_scc1 K1_REDO_L")
    p = []
    for qb in range(4):
        p += rowmax_all(mxs[qb], rel) + [f"v_sub_f32 {negm(qb)[e]}, 0, {mxs[qb]}" for e in range(4)]
    p += [f"v_accvgpr_write_b32 {Oacc(db, qb)[e]}, 0" for db in range(8) for qb in range(4) for e in range(4)]
    p += [f"v_accvgpr_write_b32 {Lacc(qb)[e]}, 0" for qb in range(4) for e in range(4)]
    p += [f"s_mov_b32 {sSrc}, {sW8k}", f"s_mov_b32 {sWr}, 0"]
    for n in range(3): p += att_dmas() + [f"s_add_u32 {sWr}, {sWr}, {SLOT}"]
    A(texts(plain(p))); A("s_branch K1_ATT")

def kernel1(A, code_bytes):
    A(kernel_header("fused_kernel"))
    A(["s_cmp_ge_u32 s2, 256", "s_cbranch_scc1 K1_END", f"s_getpc_b64 {sPC}"])
    pro = k1_prologue(code_bytes)
    gm = k1_gemms(pro)
    both, left = fix_waits(pro + gm)
    tx = texts(both)
    for l in tx:
        if l.endswith(";PF"):
            d, a_ = [x.strip(" ,") for x in l.split()[1:3]]
            l = f"global_load_dword {d}, {a_}, {sPC}"
        A(l)
    A(stamp("gemm_done"))
    k1_transition(A, both[-12:])
    k1_attention(A)

def kernel2(A):
    sA, sB, sO = Sg(8, 4), Sg(12, 4), Sg(16, 4)
    sw, srt, scg, shf, soa, sob, sos, t0, t1 = [Sg(20 + k) for k in range(9)]
    va = V(2, 4); vb = V(6); lane = V(7); x = V(8); y = V(9)
    D = 7
    fr = lambda t, k: Ac(36 * (t % D) + 4 * k, 4)
    acc = lambda c, r: V(16 + 4 * (4 * c + r), 4)
    A(kernel_header("outproj_kernel"))
    A(["s_cmp_ge_u32 s2, 256", "s_cbranch_scc1 K2_END"])
    p = [f"s_load_dwordx2 {sB[0:2]}, s[0:1], 96", f"s_load_dwordx2 {sO[0:2]}, s[0:1], 80",
         f"v_lshrrev_b32 {x}, 6, v0", f"v_and_b32 {lane}, 63, v0", f"v_readfirstlane_b32 {sw}, {x}",
         f"s_bfe_u32 {srt}, s2, 0x20001", f"s_lshr_b32 {t0}, s2, 5", f"s_lshl3_add_u32 {srt}, {srt}, {t0}",
         f"s_and_b32 {scg}, s2, 1", f"s_bfe_u32 {t0}, s2, 0x10004", f"s_lshl1_add_u32 {scg}, {scg}, {t0}",
         f"s_bfe_u32 {shf}, s2, 0x10003", f"s_mul_i32 {scg}, {scg}, 9",
         f"s_mul_i32 {t0}, {shf}, 5", f"s_add_u32 {sob}, {scg}, {t0}", f"s_lshl_b32 {sob}, {sob}, 10",
         f"s_add_u32 {sos}, {scg}, 4", f"s_lshl_b32 {sos}, {sos}, 10", f"s_mov_b32 {soa}, 0",
         f"v_lshlrev_b32 {x}, 4, {lane}", f"s_mul_i32 {t0}, {sw}, {WT_KS}", f"v_add_u32 {vb}, {t0}, {x}"]
    for r in range(4):
        p += [f"s_lshl1_add_u32 {t0}, {shf}, {r}", f"s_and_b32 {t0}, {t0}, 3", f"s_lshl2_add_u32 {t0}, {srt}, {t0}", f"s_mul_i32 {t0}, {t0}, 146",
              f"s_add_u32 {t0}, {t0}, {sw}", f"s_lshl_b32 {t0}, {t0}, 10", f"v_add_u32 {va[r]}, {t0}, {x}"]
    p += ["s_waitcnt lgkmcnt(0)", f"s_add_u32 {sA[0]}, {sB[0]}, {WS_CTX}", f"s_addc_u32 {sA[1]}, {sB[1]}, 0"] + srd(sA, CTX_SZ)
    p += [f"s_add_u32 {sB[0]}, {sB[0]}, {WS_WT}", f"s_addc_u32 {sB[1]}, {sB[1]}, 0"] + srd(sB, WT_SZ) + srd(sO, 2048 * 1152)
    def loads(t):
        o = [f"buffer_load_dwordx4 {fr(t, r)}, {va[r]}, {sA}, {soa} offen" for r in range(4)]
        o += [f"buffer_load_dwordx4 {fr(t, 4 + c)}, {vb}, {sB}, {sob} offen offset:{1024 * c}" for c in range(4)]
        o += [f"buffer_load_dwordx4 {fr(t, 8)}, {vb}, {sB}, {sos} offen"]
        o += [f"s_add_u32 {soa}, {soa}, 4096", f"s_add_u32 {sob}, {sob}, {4 * WT_KS}", f"s_add_u32 {sos}, {sos}, {4 * WT_KS}"]
        return o
    NT = 37
    for t in range(D): p += loads(t)
    for t in range(NT):
        p.append(f"s_waitcnt vmcnt({9 * min(D - 1, NT - 1 - t)})")
        for c in range(5):
            for r in range(4 if c < 4 else 2):
                p.append(f"{MF} {acc(c, r)}, {fr(t, 4 + c)}, {fr(t, r)}, {0 if t == 0 else acc(c, r)}")
        if t + D < NT: p += loads(t + D)
    p += [f"s_lshl_b32 {t0}, {sw}, 10", f"v_add_u32 {y}, {t0}, {x}", f"v_add_u32 {vb}, 0x10000, {y}"]
    for n in range(18): p.append(f"ds_write_b128 {y if n < 16 else vb}, {V(16 + 4 * n, 4)} offset:{4096 * (n & 15)}")
    p += [f"s_lshl_b32 {t0}, {sw}, 12", f"v_add_u32 {y}, {t0}, {x}", f"s_and_b32 {t0}, {t0}, 4096", f"s_add_u32 {t0}, {t0}, 0x10000", f"v_add_u32 {vb}, {t0}, {x}",
          f"s_lshl1_add_u32 {t0}, {shf}, {sw}", f"s_and_b32 {t0}, {t0}, 3", f"s_lshl2_add_u32 {t0}, {srt}, {t0}", f"s_lshl_b32 {t0}, {t0}, 4",
          f"v_and_b32 {va[0]}, 15, {lane}", f"v_add_u32 {va[0]}, {t0}, {va[0]}", f"v_mul_u32_u24 {va[0]}, 1152, {va[0]}",
          f"v_lshrrev_b32 {va[1]}, 4, {lane}", f"v_lshl_add_u32 {va[0]}, {va[1]}, 3, {va[0]}",
          f"s_mul_i32 {t0}, {shf}, 5", f"s_add_u32 {t0}, {t0}, {scg}", f"s_lshl_b32 {t0}, {t0}, 5",
          f"s_add_u32 {t1}, {scg}, 4", f"s_lshl_b32 {t1}, {t1}, 5", f"s_cmp_lt_u32 {sw}, 2", f"s_cselect_b32 {t1}, {t1}, {OOB}",
          "s_waitcnt lgkmcnt(0)", "s_barrier"]
    for c in range(5):
        for u in range(4): p.append(f"ds_read_b128 {V(16 + 16 * c + 4 * u, 4)}, {y if c < 4 else vb} offset:{1024 * u + 16384 * (c & 3)}")
    for c in range(5):
        b = 16 + 16 * c
        for e in range(0, 4, 2):
            p += [f"v_pk_add_f32 {V(b + e, 2)}, {V(b + e, 2)}, {V(b + 4 + e, 2)}", f"v_pk_add_f32 {V(b + 8 + e, 2)}, {V(b + 8 + e, 2)}, {V(b + 12 + e, 2)}",
                  f"v_pk_add_f32 {V(b + e, 2)}, {V(b + e, 2)}, {V(b + 8 + e, 2)}"]
        p += [f"v_cvt_pk_bf16_f32 {V(b)}, {V(b)}, {V(b + 1)}", f"v_cvt_pk_bf16_f32 {V(b + 1)}, {V(b + 2)}, {V(b + 3)}"]
        p.append(f"buffer_store_dwordx2 {V(b, 2)}, {va[0]}, {sO}, {t0 if c < 4 else t1} offen" + (f" offset:{32 * c}" if 0 < c < 4 else ""))
    out, _ = fix_waits(plain(p))
    A(texts(out))
    A.label("K2_END"); A("s_endpgm")

HEADER = open(os.path.join(os.path.dirname(os.path.abspath(__file__)), "..", NAME + ".s.ref")).read().split("; Override launch")[0]

def generate(code_bytes=65536):
    stamp_n[0] = 0; Opt.stamp_names = []
    A = Asm()
    A(HEADER)
    A("; @launch kernel=fused_kernel grid=(256,1,1) block=(256,1,1) lds=163840")
    A("; @launch kernel=outproj_kernel grid=(256,1,1) block=(256,1,1) lds=73728")
    A('.amdgcn_target "amdgcn-amd-amdhsa--gfx950"'); A(".text")
    kernel1(A, code_bytes)
    kernel2(A)
    A('.section .rodata,"a"'); A(".p2align 6"); A(kernel_desc("fused_kernel")); A(".p2align 6"); A(kernel_desc("outproj_kernel"))
    return A.text()

if __name__ == "__main__":
    Opt.verbose = "-v" in sys.argv
    Opt.stamps = "--stamps" in sys.argv
    out = [a for a in sys.argv[1:] if not a.startswith("-")]
    path = out[0] if out else os.path.join(os.path.dirname(os.path.abspath(__file__)), "..", NAME + ".s")
    open(path, "w").write(generate())
    print("wrote", path)
```

```python
import sys, os, struct
sys.path.insert(0, os.path.dirname(os.path.abspath(__file__)))
from asmlib import *
from sched import *

NAME = "gated_mix__sliding_local_dilated__compressed_kv_cla__prompt"
SLOT = 32768
HEADSZ = 33 * SLOT
WS_KV = 0
WS_CTX = 0x2200000; CTX_RB = 146 * 1024; CTX_SZ = 128 * CTX_RB
WS_WT = 0x3600000; WT_KS = 36 * 1024; WT_SZ = 146 * WT_KS
WS_WA = 0x3C00000; WA_SZ = 576 * 128
WS_FL = 0x3F00000; FL_SZ = 256 * 128
WS_X = 0x4000000; X_WG = 36 * 1024
WS_ST = 0x3F80000
OOB = 0x40000000
NEGBIG = 0xf149f2ca
def fbits(x): return struct.unpack("<I", struct.pack("<f", x))[0]
LOG2E = 1.4426950408889634
MF = "v_mfma_f32_16x16x32_bf16"
V = lambda i, n=1: R('v', i, n)
Ac = lambda i, n=1: R('a', i, n)
Sg = lambda i, n=1: R('s', i, n)

class Opt:
    verbose = False
    stamps = False
    st_flags = "sc1"
    ld_flags = "sc1"
    w_flags = "nt"
    pf = (1, 12)
    sig2 = 3
    poll2_at = 30
    st0 = 976
    pf_wo = False
    pf_wq = "mall"
    t_flags = "nt"
    poll3_pct = 75
    exp = ""
    st_gap = 17

sWV_ = Sg(4); sH = Sg(5); sJ = Sg(6); sT = Sg(7); sT2 = Sg(3)
sC, sWK, sWVv, sX, sWQ, sA0, sA1, sKV, sCTX, sDBG, sT0, sT1, sWT = [Sg(8 + 4 * k, 4) for k in range(13)]
sFL = sA1
sAl, sBe, sAlF, sBeF, sOut = sC, sWK, sWVv, sX, sWQ
soW, soC1, soC2, soX1, soX2, soA0, soA1, sW2k, sW1k, sW4k, sK0, sV0, sSt = [Sg(60 + k) for k in range(13)]
sCH128, sScale, sW8k, sWr, sSrc, sCnt, sStg, sCtxS, sCtxL, sRd, sRedo = [Sg(73 + k) for k in range(11)]
sFail = Sg(84, 2); sM0 = Sg(86, 2); sPt = Sg(88, 2); sPt2 = Sg(90, 2); sPt3 = Sg(92, 2); sPC = Sg(94, 2)
sStamp = Sg(96, 2); sU = Sg(98); sU2 = Sg(99); sSrc2 = Sg(100); sMy = Sg(101); sPrev = soW; sSpin = sPC[0]; sH4 = sPC[1]

vL16 = V(1); vW = V(2, 4); vC = V(6, 4); vH = V(6); vPoll = V(7); vX = V(10, 4); rW = V(14, 8); rC = V(22, 2); rH = rC
rX = V(24, 2); rA = V(26, 4); vSig = V(30); vLane = V(31); tmp = V(32, 8); Wf = [V(40 + 8 * k, 8) for k in range(3)]
Xf = [V(64, 32), V(96, 32)]
Kacc = lambda cb, rb: V(128 + 32 * cb + 4 * rb, 4)
Vacc = lambda cb, rb: Ac(128 + 32 * cb + 4 * rb, 4)
Cf = lambda buf, rb, ks: Ac(64 * buf + 8 * rb + 4 * ks, 4)
Kpk = lambda n: Ac(4 * n, 4)
Qacc = lambda cb, qb: V(128 + 16 * cb + 4 * qb, 4)
Aacc = lambda sl, qb: Ac(64 + 16 * sl + 4 * qb, 4)
Hacc = lambda sl: Ac(128 + 4 * sl, 4)
Hf = lambda ks: Ac(136 + 4 * ks, 4)
Qf = lambda qb, p: V(128 + 32 * p + 4 * qb, 4)
negm = lambda qb: V(144 + 4 * qb, 4)
CA = lambda kb: V(176 + 4 * kb, 4)
tri = V(208, 4); nbt = V(212, 4)
Sr = lambda n: V(240 + 4 * (n % 4), 4)
Pf = lambda par, qb, ks: V(32 + 32 * par + 8 * qb + 4 * ks, 4)
def Oacc(db, qb):
    n = db * 4 + qb
    return Ac(4 * n, 4) if n < 16 else Ac(144 + 4 * (n - 16), 4)
Lacc = lambda qb: Ac(208 + 4 * qb, 4)
ones = Ac(136, 4)
Kf = lambda kb, ks: Ac(224 + 16 * (kb & 1) + 4 * ks, 4)
Vf = lambda n, ks: V(96 + 8 * (n % 4) + 4 * ks, 4)
vRd = V(2); vPl = V(3); omg = V(4, 4); et = V(8, 20)
def regs(r): return [('v', r.i + e + (256 if r.k == 'a' else 0)) for e in range(r.n)]

def srd(r, size): return [f"s_mov_b32 {r[2]}, {size}", f"s_mov_b32 {r[3]}, 0x20000"]

class Win:
    def __init__(self): self.w = {}
    def off(self, Rg, reg, addr, **kw):
        win = addr >> 16; cur = self.w.get(reg.i, 0)
        if win != cur:
            Rg(f"v_add_u32 {reg}, {((win - cur) << 16) & 0xffffffff:#x}, {reg}", **kw); self.w[reg.i] = win
        return addr & 0xffff

stamp_n = [0]
def stamp(name):
    out = [f"; @mark {name}"]
    if Opt.stamps:
        k = stamp_n[0]; stamp_n[0] += 1
        out += ["s_waitcnt lgkmcnt(0)", f"s_memrealtime {sStamp}", "s_waitcnt lgkmcnt(0)", f"v_writelane_b32 v0, {sStamp[0]}, {k}"]
        Opt.stamp_names.append(name)
    return out

EARLY = [("start", sStamp), ("first_data", Sg(78, 2)), ("p1_mid", sPt), ("p1_done", Sg(80, 2)), ("p2_mid", sPt2)]
def early(name): return f"s_memrealtime {dict(EARLY)[name]}"
def early_flush():
    out = ["s_waitcnt lgkmcnt(0)"]
    for nm, r in EARLY:
        out.append(f"v_writelane_b32 v0, {r[0]}, {stamp_n[0]}"); stamp_n[0] += 1; Opt.stamp_names.append(nm)
    return out

def dma(vo, srd_, so, off=0, fl=""):
    return f"buffer_load_dwordx4 {vo}, {srd_}, {so} offen" + (f" offset:{off}" if off else "") + (f" {fl}" if fl else "") + " lds"

def slot_desc(i):
    if i == 0: return ("c", 0, 0), ("c", 0, 1)
    if i <= 16:
        s, hi = (i - 1) >> 1, (i - 1) & 1
        return ("wv" if hi else "wk", s), (("c", s + 1, hi) if s < 7 else ("x", 0, hi))
    s, hi = (i - 17) >> 1, (i - 17) & 1
    return ("wa" if hi else "wq", s), (("x", s + 1, hi) if s < 8 else ("t", hi))

def slot_dmas(i):
    base = (i % 5) * SLOT; out = []
    for area, d in enumerate(slot_desc(i)):
        lb = base + area * 16384; k = d[0]
        if k == "wa":
            out += [f"s_add_u32 m0, {sW2k}, {lb}"] + [dma(vL16, sA0, soA0, 1024 * q, Opt.ld_flags) for q in range(2)]
            out += [f"s_add_u32 m0, {sW1k}, {lb + 8192}", dma(vH, sX, soA1), f"s_add_u32 {soA0}, {soA0}, 8192", f"s_add_u32 {soA1}, {soA1}, 128"]
            continue
        out.append(f"s_add_u32 m0, {sW4k}, {lb}")
        if k == "t":
            if d[1] == 0: out += [dma(vX[q], sT0, 0, 1024 * q, Opt.t_flags) for q in range(4)]
            else:
                out.append(dma(vW[0], sT1, 0)); out.append(f"s_add_u32 m0, {sW4k}, {lb + 1024}"); out.append(dma(vW[1], sT1, 0))
            continue
        if k == "wq" and d[1] == 0: out.append(f"s_lshl_b32 {soW}, {sH}, 8")
        vo, sr, so = {"wk": (vW, sWK, soW), "wv": (vW, sWVv, soW), "wq": (vW, sWQ, soW),
                      "c": (vC, sC, soC2 if d[-1] else soC1), "x": (vX, sX, soX2 if d[-1] else soX1)}[k]
        out += [dma(vo[q], sr, so, 1024 * q, Opt.w_flags if k in ("wk", "wv") else "") for q in range(4)]
        if k in ("wv", "wq"): out.append(f"s_add_u32 {soW}, {soW}, {64 * 8192}")
        if k in ("c", "x"): out.append(f"s_add_u32 {so}, {so}, 128")
    return out

RP = [V(80 + 4 * u, 4) for u in range(3)]; RPG = V(92, 3); RPA = V(95)
vPF = V(103)
def k1_prologue(code_lines):
    t = [V(64 + k) for k in range(16)]
    st = Xf[1]
    p = []
    p += [f"s_load_dwordx2 {sC[0:2]}, s[0:1], 32", f"s_load_dwordx2 {sWK[0:2]}, s[0:1], 48", f"s_load_dwordx2 {sWVv[0:2]}, s[0:1], 56",
          f"s_load_dwordx2 {sX[0:2]}, s[0:1], 0", f"s_load_dwordx2 {sWQ[0:2]}, s[0:1], 40", f"s_load_dwordx2 {sA0[0:2]}, s[0:1], 8",
          f"s_load_dwordx2 {sA1[0:2]}, s[0:1], 72", f"s_load_dwordx2 {sT0[0:2]}, s[0:1], 64", f"s_load_dwordx2 {sPt3}, s[0:1], 16",
          f"s_load_dwordx2 {sDBG[0:2]}, s[0:1], 88", f"s_load_dwordx2 {sWT[0:2]}, s[0:1], 96"]
    p += [f"v_min_u32 {t[10]}, {code_lines - 1}, v0", f"s_lshr_b32 {sT}, s2, 3", f"s_mul_i32 {sT}, {sT}, {code_lines}",
          f"v_add_lshl_u32 {t[10]}, {t[10]}, {sT}, 7", f"buffer_load_dword {t[12]}, {t[10]}, {sKV}, 0 offen ;PF"]
    p += [f"v_lshrrev_b32 {t[0]}, 6, v0", f"v_and_b32 {vLane}, 63, v0", f"v_readfirstlane_b32 {sWV_}, {t[0]}",
          f"s_and_b32 {sH}, s2, 7", f"s_lshl_b32 {sH}, {sH}, 2", f"s_bfe_u32 {sT}, s2, 0x20003", f"s_add_u32 {sH}, {sH}, {sT}",
          f"s_lshr_b32 {sJ}, s2, 5", f"s_lshl_b32 {sW4k}, {sWV_}, 12"]
    p += srd(sC, 2048 * 1024) + srd(sWK, 512 * 8192) + srd(sWVv, 512 * 8192)
    p += [f"v_lshrrev_b32 {t[1]}, 3, {vLane}", f"v_and_b32 {t[2]}, 7, {vLane}", f"v_lshrrev_b32 {t[3]}, 1, {t[1]}",
          f"v_xor_b32 {t[2]}, {t[2]}, {t[3]}", f"v_lshlrev_b32 {t[2]}, 4, {t[2]}", f"v_xor_b32 {t[3]}, 64, {t[2]}",
          f"s_lshr_b32 {sT}, {sWV_}, 1", f"s_lshl_b32 {sCH128}, {sT}, 7", f"s_and_b32 {sT2}, {sWV_}, 1", f"s_lshl_b32 {sU}, {sT2}, 5",
          f"s_add_u32 {sU}, {sU}, {sCH128}", f"v_add_lshl_u32 {t[4]}, {t[1]}, {sU}, 10"]
    for q in range(4):
        p += [f"v_add_u32 {vC[q]}, {t[4]}, {t[2 + (q & 1)]}"] + ([f"v_add_u32 {vC[q]}, {q * 7168}, {vC[q]}"] if q else [])
    p += [f"v_lshrrev_b32 {t[5]}, 4, {vLane}", f"v_and_b32 {t[6]}, 15, {vLane}", f"v_lshlrev_b32 {t[7]}, 1, {t[5]}",
          f"v_xor_b32 {t[7]}, {t[7]}, {t[6]}", f"v_lshlrev_b32 {t[7]}, 4, {t[7]}", f"v_xor_b32 {t[8]}, 128, {t[7]}",
          f"s_lshl_b32 {sU}, {sWV_}, 4", f"v_add_lshl_u32 {t[9]}, {t[5]}, {sU}, 13"]
    for q in range(4):
        p += [f"v_add_u32 {vW[q]}, {t[9]}, {t[7 + (q >> 1)]}"] + ([f"v_add_u32 {vW[q]}, {q * (4 * 8192 - 1024)}, {vW[q]}"] if q else [])
    p += [f"s_lshl_b32 {soW}, {sH}, 8", f"s_lshl_b32 {soC1}, {sJ}, 18", f"s_add_u32 {soC2}, {soC1}, {64 * 1024}"]
    p += ["s_waitcnt lgkmcnt(0)"]
    pre = plain(p)
    d01 = [tagged(x, f"slot{i}") for i in range(2) for x in slot_dmas(i)]
    d23 = [tagged(x, f"slot{i}") for i in (2, 3) for x in slot_dmas(i)]
    pre += plain(d01, pre)
    p = []
    p += srd(sX, 2048 * 1152) + srd(sWQ, 576 * 8192) + srd(sT0, 4096 * 1152) + srd(sDBG, 256) + srd(sA0, 576 * 3456) + srd(sA1, 1152)
    p += [f"s_mul_i32 {sT}, {sH}, {HEADSZ}", f"s_add_u32 {sKV[0]}, {sWT[0]}, {sT}", f"s_addc_u32 {sKV[1]}, {sWT[1]}, 0"] + srd(sKV, HEADSZ)
    p += [f"s_add_u32 {sCTX[0]}, {sWT[0]}, {WS_CTX}", f"s_addc_u32 {sCTX[1]}, {sWT[1]}, 0"] + srd(sCTX, CTX_SZ)
    p += [f"s_cmp_eq_u32 {sWV_}, 0", f"s_cselect_b64 {sM0}, 1, 0",
          f"s_cselect_b32 {sT1[0]}, {sT0[0]}, {sPt3[0]}", f"s_cselect_b32 {sT1[1]}, {sT0[1]}, {sPt3[1]}",
          f"s_cselect_b32 {sT1[2]}, {sT0[2]}, {576 * 1152}", f"s_mov_b32 {sT1[3]}, 0x20000"]
    p += [f"s_mul_i32 {soX1}, {sJ}, {128 * 1152}", f"s_sub_u32 {soX2}, {15 * 128 * 1152}, {soX1}",
          f"s_lshl_b32 {sW2k}, {sWV_}, 11", f"s_lshl_b32 {sW1k}, {sWV_}, 10", f"s_lshl_b32 {sW8k}, {sWV_}, 13", f"s_mov_b32 {soA0}, {sW2k}", f"s_mov_b32 {soA1}, 0"]
    p += [f"s_lshl_b32 {sK0}, {sJ}, 2", f"s_lshl1_add_u32 {sK0}, {sT2}, {sK0}", f"s_lshl_b32 {sK0}, {sK0}, 15",
          f"s_lshl_b32 {sU}, {sCH128}, 6", f"s_add_u32 {sV0}, {sK0}, {sU}", f"s_add_u32 {sV0}, {sV0}, {SLOT + 16384}",
          f"s_lshl_b32 {sU}, {sCH128}, 4", f"s_add_u32 {sK0}, {sK0}, {sU}"]
    p += [f"v_lshlrev_b32 {vL16}, 4, {vLane}", f"v_mov_b32 {t[13]}, {OOB}", f"v_cmp_eq_u32 vcc, 0, v0", f"v_cndmask_b32_e64 {vSig}, {t[13]}, 0, vcc",
          f"v_lshlrev_b32 {vPF}, 7, {vLane}", f"v_cmp_gt_u32 vcc, 9, {vLane}", f"v_cndmask_b32 {vPF}, {t[13]}, {vPF}, vcc"]
    p += [f"s_lshl_b32 {sU}, {sWV_}, 5", f"v_add_u32 {t[4]}, {sU}, {t[1]}", f"v_mul_u32_u24 {t[4]}, 1152, {t[4]}"]
    for q in range(4):
        p += [f"v_add_u32 {vX[q]}, {t[4]}, {t[2 + (q & 1)]}"] + ([f"v_add_u32 {vX[q]}, {q * (8 * 1152 - 1024)}, {vX[q]}"] if q else [])
    p += [f"s_sub_u32 {sU}, 15, {sJ}", f"s_cmp_eq_u32 {sCH128}, 0", f"s_cselect_b32 {sU}, {sJ}, {sU}", f"s_lshl_b32 {sU}, {sU}, 7",
          f"s_sub_u32 {sU}, {sU}, 16", f"s_max_i32 {sU}, {sU}, 0", f"s_lshl3_add_u32 {sU}, {sT2}, {sU}",
          f"v_add_u32 {t[4]}, {sU}, {t[1]}", f"v_mul_u32_u24 {t[4]}, 1152, {t[4]}", f"s_lshl_b32 {sU}, {sT2}, 6",
          f"v_xor_b32 {t[9]}, {sU}, {t[2]}", f"v_add_u32 {st[0]}, {t[4]}, {t[9]}"]
    g, l15 = t[5], t[6]
    p += [f"v_lshrrev_b32 {t[7]}, 1, {l15}", f"v_xor_b32 {t[7]}, {t[7]}, {g}", f"v_lshlrev_b32 {t[7]}, 4, {t[7]}",
          f"v_lshl_add_u32 {t[7]}, {l15}, 7, {t[7]}", f"v_xor_b32 {t[8]}, 64, {t[7]}"]
    p += [f"s_lshl_b32 {sU}, {sT2}, 13"] + [f"v_add_u32 {rC[k]}, {sU}, {t[7 + k]}" for k in range(2)]
    p += [f"v_add_u32 {rX[k]}, {sW2k}, {t[7 + k]}" for k in range(2)]
    p += [f"s_lshl_b32 {sU}, {sT2}, 11", f"s_add_u32 {sU}, {sU}, 8192"] + [f"v_add_u32 {st[4 + k]}, {sU}, {t[7 + k]}" for k in range(2)]
    r_, c_, row, f_, g1 = t[9], t[10], t[11], t[13], t[14]
    p += [f"v_bfe_u32 {r_}, {vLane}, 2, 2", f"v_and_b32 {c_}, 3, {vLane}", f"v_lshl_add_u32 {row}, {g}, 3, {r_}",
          f"v_and_b32 {g1}, 1, {g}", f"v_lshl_add_u32 {f_}, {g1}, 2, {r_}", f"v_lshlrev_b32 {f_}, 5, {f_}",
          f"v_lshl_add_u32 {f_}, {c_}, 3, {f_}", f"v_lshl_add_u32 {f_}, {row}, 8, {f_}"]
    for cb in range(8):
        p += [f"v_xor_b32 {rW[cb]}, {32 * cb}, {f_}"] + ([f"v_xor_b32 {rW[cb]}, {sCH128}, {rW[cb]}"] if cb < 4 else [])
    p += [f"v_lshrrev_b32 {f_}, 1, {r_}", f"v_lshl_add_u32 {f_}, {g1}, 1, {f_}", f"v_lshlrev_b32 {f_}, 5, {f_}",
          f"v_lshl_add_u32 {f_}, {c_}, 3, {f_}", f"v_lshl_add_u32 {f_}, {row}, 7, {f_}", f"s_lshr_b32 {sU}, {sCH128}, 1"]
    for sl in range(4):
        p += [f"v_xor_b32 {rA[sl]}, {32 * sl}, {f_}"] + ([f"v_xor_b32 {rA[sl]}, {sU}, {rA[sl]}"] if sl in (0, 2) else [])
    c8, k0, o0, o1, x0, x1 = t[9], t[10], t[11], t[13], t[14], t[15]
    p += [f"v_and_b32 {c8}, 7, v0", f"v_lshrrev_b32 {k0}, 3, v0", f"s_mul_i32 {sU}, {sJ}, 72", f"v_add_u32 {k0}, {sU}, {k0}"]
    for o, add in ((o0, 0), (o1, 1)):
        p += [f"v_lshl_add_u32 {o}, {c8}, 1, {add}", f"v_mul_u32_u24 {x0}, 52, {o}", f"v_lshrrev_b32 {x0}, 8, {x0}",
              f"v_mul_u32_u24 {x1}, 5, {x0}", f"v_sub_u32 {o}, {o}, {x1}", f"v_add_u32 {x0}, 1, {x0}",
              f"v_cmp_le_u32 vcc, 3, {x0}", f"v_cndmask_b32_e64 {x0}, {x0}, 0, vcc", f"v_mul_u32_u24 {x0}, 1152, {x0}",
              f"v_lshl_add_u32 {o}, {o}, 3, {x0}", f"v_mul_u32_u24 {x0}, 3456, {k0}", f"v_add_u32 {o}, {o}, {x0}"]
    p += [f"v_lshlrev_b32 {x0}, 1, {k0}", f"s_mul_i32 {sU}, {sH}, 36", f"s_mov_b32 {sU2}, 0"]
    rl = []
    for u in range(3):
        if u == 2: rl += [f"s_cmp_eq_u32 {sWV_}, 0", f"s_cselect_b32 {sU}, {sU}, {OOB}", f"s_cselect_b32 {sU2}, {sU2}, {OOB}"]
        rl += [f"buffer_load_dwordx2 {RP[u][0:2]}, {o0}, {sA0}, {sU} offen", f"buffer_load_dwordx2 {RP[u][2:4]}, {o1}, {sA0}, {sU} offen",
               f"buffer_load_ushort {RPG[u]}, {x0}, {sA1}, {sU2} offen", f"s_add_u32 {sU}, {sU}, {32 * 3456}", f"s_add_u32 {sU2}, {sU2}, 64"]
    rl += [f"v_bfe_u32 {x0}, {k0}, 1, 1", f"v_bfe_u32 {x1}, {k0}, 3, 1", f"v_lshl_add_u32 {x0}, {x1}, 1, {x0}", f"v_lshlrev_b32 {x0}, 1, {x0}",
           f"v_xor_b32 {x0}, {x0}, {c8}", f"v_lshlrev_b32 {x0}, 4, {x0}", f"v_lshl_add_u32 {RPA}, {k0}, 7, {x0}", f"v_cmp_eq_u32 {sPt3}, 7, {c8}"]
    rl += [f"s_mul_i32 {sT}, {sH}, {WA_SZ}", f"s_add_u32 {sT}, {sT}, {WS_WA}", f"s_add_u32 {sA0[0]}, {sWT[0]}, {sT}", f"s_addc_u32 {sA0[1]}, {sWT[1]}, 0",
           f"s_mov_b32 {sA0[2]}, {WA_SZ}",
           f"s_add_u32 {sFL[0]}, {sWT[0]}, {WS_FL}", f"s_addc_u32 {sFL[1]}, {sWT[1]}, 0", f"s_mov_b32 {sFL[2]}, {FL_SZ}",
           f"s_add_u32 {sWT[0]}, {sWT[0]}, {WS_WT}", f"s_addc_u32 {sWT[1]}, {sWT[1]}, 0"] + srd(sWT, WT_SZ)
    rl += [f"s_lshl_b32 {sMy}, {sJ}, 5", f"s_add_u32 {sMy}, {sMy}, {sH}", f"s_lshl_b32 {sMy}, {sMy}, 7", f"v_mov_b32 {x1}, 0",
           f"v_lshlrev_b32 {x0}, 2, v0", f"v_cmp_gt_u32 vcc, 5, v0", f"v_cndmask_b32 {x0}, {vSig}, {x0}, vcc",
           f"buffer_store_dword {x1}, {x0}, {sFL}, {sMy} offen {Opt.st_flags}"]
    if "nost" in Opt.exp: rl += [f"s_mov_b32 {sKV[2]}, 0"]
    if "nowa" in Opt.exp: rl += [f"s_mov_b32 {sA0[2]}, 0"]
    if "nox" in Opt.exp: rl += [f"s_mov_b32 {sX[2]}, 0"]
    if "nowq" in Opt.exp: rl += [f"s_mov_b32 {sWQ[2]}, 0"]
    rl += [f"s_mov_b32 {sScale}, {fbits(128 ** -0.5 * LOG2E):#x}", f"s_mov_b64 {sFail}, 0", f"s_mov_b32 {sRedo}, 0", f"s_lshl_b32 {sH4}, {sH}, 3"]
    if Opt.stamps: rl += ["v_mov_b32 v0, 0"]
    return pre + plain(weave(p, d23) + rl, pre)

def weave(body, extra, start=0, end=None):
    txt = lambda x: x if isinstance(x, str) else x.text
    groups, cur = [], []
    for x in extra:
        cur.append(x)
        if txt(x).startswith("buffer"): groups.append(cur); cur = []
    if cur: groups[-1] += cur
    end = len(body) if end is None else end
    ok = []; masked = False
    for n in range(len(body) + 1):
        live = False
        for y in body[n:]:
            if SCC_R.match(txt(y)): live = True; break
            if SCC_W.match(txt(y)): break
        ok.append(not live and not masked)
        if n < len(body) and " exec," in txt(body[n]): masked = not txt(body[n]).endswith("exec, -1")
    out = []; k = 0
    for n in range(len(body) + 1):
        while k < len(groups) and ok[n] and (n >= start + (k * (end - start)) // len(groups) or n == len(body)):
            out += groups[k]; k += 1
        if n < len(body): out.append(body[n])
    assert k == len(groups)
    return out

spins = []
def check(name, reg, thr, mask, reload_):
    spins.append((name, reg, thr, mask, reload_))
    return [f"v_cmp_gt_u32 vcc, {thr}, {reg}", f"s_and_b64 vcc, vcc, {mask}", f"s_cbranch_scc1 SPIN_{name}", f"BACK_{name}:"]
def emit_spins(A):
    for k, (name, reg, thr, mask, reload_) in enumerate(spins):
        A.label(f"SPIN_{name}"); A(f"s_mov_b32 {sSpin}, 0"); A.label(f"SPIN_{name}_L")
        A(["s_sleep 2", reload_, f"s_add_u32 {sSpin}, {sSpin}, 1", f"s_cmp_ge_u32 {sSpin}, 0x40000", "s_waitcnt vmcnt(0)", f"s_cbranch_scc1 BACK_{name}",
           f"v_cmp_gt_u32 vcc, {thr}, {reg}", "s_nop 1", f"s_and_b64 vcc, vcc, {mask}", f"s_cbranch_scc1 SPIN_{name}_L"])
        if Opt.stamps: A(f"v_writelane_b32 v0, {sSpin}, {40 + k}")
        A(f"s_branch BACK_{name}")

def k1_gemms(prev):
    Rg = Region("gemm"); W = Win()
    st = Xf[1]
    LEAD = 11
    wfn = [0]
    poll = f"buffer_load_dword {vPoll}, {vSig}, {sDBG}, {sH4} offen sc1"
    poll2 = f"buffer_load_dword {vPoll}, {vC[2]}, {sFL}, {soC1} offen sc1"
    def signal2(i):
        Rg(f"v_mov_b32 {vLane}, 1")
        Rg(f"buffer_store_dword {vLane}, {vSig}, {sFL}, {sMy} offen {Opt.st_flags}", rd=[('x', f"bar{i}")], by=Rg.nm + 12, tag="sig")
    def signal(i):
        Rg(f"v_mov_b32 {vLane}, 1")
        Rg(f"buffer_atomic_add {vLane}, {vSig}, {sDBG}, {sH4} offen sc1", rd=[('x', f"bar{i}")], by=Rg.nm + 16, tag="sig")
    def bar(i, pos, n_gaps):
        chk = []; tags = f"slot{i + 1}"
        if i == 14: chk = check("WA", vPoll, 8, sM0, poll); tags += " poll14"
        if i == 33: chk = check("KV", vPoll, 1, "exec", poll2); tags += " poll33"
        Rg([f"WAITVM {tags}"] + chk + ["s_barrier"], at=pos, by=pos, pin=True, rd=[('x', f"iss{i + 3}"), ('x', f"rd{i - 1}")], wr=[('x', f"bar{i}")])
        B = dict(rd=[('x', f"bar{i}")])
        if i == 12: Rg(poll, at=pos + 1, by=pos + 1, tag="poll14", rd=[('x', f"bar{i}")], wr=[('x', "iss16")])
        if i == 32:
            Rg(f"v_bfe_u32 {vC[2]}, {vL16}, 4, 3"); Rg(f"v_lshlrev_b32 {vC[2]}, 12, {vC[2]}"); Rg(f"s_lshl_b32 {soC1}, {sH}, 7")
            Rg(poll2, at=pos + Opt.poll2_at, by=pos + Opt.poll2_at + 1, tag="poll33", **B)
        if i == 3:
            for u in range(3):
                Rg(f"v_cndmask_b32 {RP[u][2]}, {RP[u][2]}, {RPG[u]}, {sPt3}", **B); Rg(f"v_cndmask_b32_e64 {RP[u][3]}, {RP[u][3]}, 0, {sPt3}", **B)
                Rg([f"s_mov_b32 {sSt}, {4096 * u}"] + ([f"s_cmp_eq_u32 {sWV_}, 0", f"s_cselect_b32 {sSt}, {sSt}, {OOB}"] if u == 2 else []))
                Rg(f"buffer_store_dwordx4 {RP[u]}, {RPA}, {sA0}, {sSt} offen {Opt.st_flags}", by=pos + 12 + 6 * u, wr=[('x', "iss7")])
        if i == 7: signal(i)
        if i == 33:
            Rg(f"s_sub_u32 {sT}, 33, {sJ}"); Rg(f"s_sub_u32 {sT}, {sT}, {sJ}"); Rg(f"s_lshl_b32 {sKV[2]}, {sT}, 15", **B)
            Rg(f"s_mov_b32 {sSrc}, {sW8k}"); Rg(f"s_mov_b32 {sWr}, 0"); k = 0
            for x in att_dmas() + [f"s_add_u32 {sWr}, {sWr}, {SLOT}"]:
                isd = x.startswith("buffer"); a = pos + 1 + 4 * k; k += isd
                Rg(x, at=a if isd else a - 1, by=a + 2)
        if i + 4 > 34: return
        if i + 4 == 18: Rg(f"v_mov_b32 {vH}, {st[0]}")
        if i + 4 == 33: t_setup()
        ds = slot_dmas(i + 4); nd = sum(1 for x in ds if x.startswith("buffer")); k = 0
        for x in ds:
            isd = x.startswith("buffer")
            a = pos + 1 + (k * (n_gaps - 4)) // nd
            Rg(x, at=a if isd else a - 1, by=a + 2, tag=f"slot{i + 4}", rd=[('x', f"bar{i}")] if isd else [], wr=[('x', f"iss{i + 4}")] if isd else [])
            k += isd
    def rdk(i): return dict(rd=[('x', f"bar{i - 1}")], wr=[])
    def w_reads(i, reg, base, second, kstep):
        f = Wf[wfn[0] % 3]; wfn[0] += 1
        for ks in range(2):
            for hf in range(2):
                o = W.off(Rg, reg, base + ks * kstep + hf * second)
                Rg(f"ds_read_b64_tr_b16 {f.sub(4 * ks + 2 * hf, 2)}, {reg} offset:{o}", **rdk(i))
        return f
    def act_reads(i, lst, g0, g1):
        for n, (d, reg, ad) in enumerate(lst):
            a = g0 + (n * (g1 - g0)) // len(lst)
            o = W.off(Rg, reg, ad, at=a - 1, by=a)
            Rg(f"ds_read_b128 {d}, {reg} offset:{o}", at=a, by=a + 2, rd=[('x', f"bar{i - 1}")] if i else [('x', "bar0")])
    def c_list(base, buf, part): return [(Cf(buf, 4 * part + rl, ks), rC[ks], base + 2048 * rl) for rl in range(4) for ks in range(2)]
    def x_list(base, buf, part): return [(Xf[buf].sub(16 * part + 8 * u + 4 * ks, 4), rX[ks], base + 8192 * u) for u in range(2) for ks in range(2)]
    Xfr = lambda buf, qb, ks: Xf[buf].sub(8 * qb + 4 * ks, 4)

    tA, tB = W.__class__, None
    rT = (rA[0], )
    def t_setup():
        a, b, c = tmp[0], tmp[1], tmp[2]
        Rg(f"s_lshr_b32 {sT}, {sJ}, 1"); Rg(f"s_lshl2_add_u32 {sT}, {sH}, {sT}")
        Rg(f"s_mul_i32 {sU}, {sT}, {32 * 1152}"); Rg(f"s_and_b32 {sT2}, {sJ}, 1"); Rg(f"s_mul_i32 {sU2}, {sT2}, 576")
        Rg(f"s_add_u32 {sU}, {sU}, {sU2}")
        Rg(f"s_mul_i32 {sK0}, {sT}, {WT_KS}"); Rg(f"s_mul_i32 {sU2}, {sT2}, {18 * 1024}"); Rg(f"s_add_u32 {sK0}, {sK0}, {sU2}")
        Rg(f"s_add_u32 {sV0}, {sK0}, 16384"); Rg(f"s_add_u32 {sK0}, {sK0}, {sW4k}")
        Rg(f"v_lshrrev_b32 {a}, 7, {vL16}"); Rg(f"v_mul_u32_u24 {a}, 1152, {a}"); Rg(f"v_and_b32 {b}, 0x70, {vL16}")
        Rg(f"s_lshr_b32 {sU2}, {sW4k}, 5"); Rg(f"s_add_u32 {sU2}, {sU2}, {sU}")
        Rg(f"v_add3_u32 {a}, {a}, {b}, {sU2}")
        for q in range(4): Rg(f"v_add_u32 {vX[q]}, {q * (8 * 1152 - 1024)}, {a}")
    def t_setup2():
        a, b, c, d = tmp[0], tmp[1], tmp[2], tmp[3]
        Rg(f"s_mul_hi_u32 {sT}, s2, {(2 ** 32 + 5) // 6}")
        Rg(f"s_mul_i32 {sT2}, {sT}, 6"); Rg(f"s_sub_u32 {sT2}, s2, {sT2}"); Rg(f"s_mul_i32 {sT2}, {sT2}, 6")
        Rg(f"s_lshl1_add_u32 {sT2}, {sWV_}, {sT2}"); Rg(f"s_sub_u32 {sT2}, {sT2}, 2")
        Rg(f"s_add_u32 {sSt}, {sT}, 128"); Rg(f"s_mul_i32 {sSt}, {sSt}, 36"); Rg(f"s_add_u32 {sSt}, {sSt}, {sT2}"); Rg(f"s_lshl_b32 {sSt}, {sSt}, 10")
        Rg([f"s_cmp_eq_u32 {sWV_}, 0", f"s_cselect_b32 {sV0}, {sV0}, {sSt}"])
        Rg(f"s_lshl_b32 {sT2}, {sT2}, 5")
        Rg(f"v_lshrrev_b32 {a}, 8, {vL16}"); Rg(f"v_lshl_add_u32 {a}, {sT}, 2, {a}")
        Rg(f"v_bfe_u32 {b}, {vL16}, 6, 2")
        for q in range(2):
            Rg(f"v_lshrrev_b32 {c}, 1, {a}"); Rg(f"v_mul_u32_u24 {c}, 18, {c}"); Rg(f"v_and_b32 {d}, 1, {a}")
            Rg(f"v_lshl_add_u32 {c}, {d}, 3, {c}"); Rg(f"v_add3_u32 {c}, {c}, {b}, {4 * q}")
            Rg(f"v_lshrrev_b32 {d}, 1, {b}"); Rg(f"v_lshl_add_u32 {d}, {a}, 2, {d}"); Rg(f"v_add_u32 {d}, {(2 * q - 256) & 0xffffffff:#x}, {d}")
            Rg(f"v_mul_u32_u24 {d}, 18, {d}"); Rg(f"v_and_b32 {vW[q]}, 1, {b}"); Rg(f"v_add3_u32 {d}, {d}, {vW[q]}, 16")
            Rg(f"v_cmp_gt_u32 vcc, 64, {a}"); Rg(f"v_cndmask_b32 {c}, {d}, {c}, vcc")
            Rg(f"v_mul_u32_u24 {c}, 1152, {c}"); Rg(f"v_add_u32 {c}, {sT2}, {c}")
            Rg(f"v_lshrrev_b32 {d}, 6, {vL16}"); Rg(f"v_mul_u32_u24 {d}, 1152, {d}"); Rg(f"v_add_u32 {d}, {sU}, {d}")
            Rg(f"v_add_u32 {d}, {512 + q * 16 * 1152}, {d}")
            Rg([f"s_cmp_eq_u32 {sWV_}, 0", f"s_cselect_b64 vcc, -1, 0"]); Rg(f"v_cndmask_b32 {c}, {c}, {d}, vcc")
            Rg(f"v_and_b32 {d}, 0x30, {vL16}"); Rg(f"v_add_u32 {vW[q]}, {c}, {d}")
        Rg(f"v_lshrrev_b32 {a}, 6, {vL16}"); Rg(f"v_bfe_u32 {b}, {vL16}, 4, 2"); Rg(f"v_lshlrev_b32 {b}, 3, {b}"); Rg(f"v_add_u32 {b}, {sW4k}, {b}")
        Rg(f"v_lshl_add_u32 {vW[2]}, {a}, 7, {b}"); Rg(f"v_lshl_add_u32 {vW[3]}, {a}, 6, {b}")
    def t_work(i, part, g0):
        base = (i % 5) * SLOT + 16384
        for u in range(4 if part == 0 else 2):
            d = tmp.sub(4 * (u & 1), 4); reg = vW[2 + part]
            for hf in range(2):
                o = W.off(Rg, reg, base + 32 * u + hf * (2048 if part == 0 else 1024))
                Rg(f"ds_read_b64_tr_b16 {d.sub(2 * hf, 2)}, {reg} offset:{o}", at=g0 + 10 * u, **rdk(i))
            Rg(f"buffer_store_dwordx4 {d}, {vL16}, {sWT}, {sK0 if part == 0 else sV0} offen offset:{1024 * u} {Opt.st_flags}", at=g0 + 10 * u + 7)

    def background(f):
        def g(*a):
            Rg.bg = True; f(*a); Rg.bg = False
        return g
    t_setup, t_setup2, t_work = background(t_setup), background(t_setup2), background(t_work)
    bar(0, -1, 54)
    act_reads(0, c_list(0, 0, 0) + c_list(16384, 0, 1), -1, -1)
    if Opt.stamps:
        for nm, g in (("first_data", 0), ("p1_mid", 512), ("p1_done", 1024), ("p2_mid", 1474)): Rg(early(nm), at=g, by=g)
    if Opt.pf:
        pf = [(sX, 9216, k) for k in range(2)] + [(sWQ, 18432, k) for k in range(4)]
        if Opt.pf_wo: pf += [(sT0, 18432, k) for k in range(4)] + [(sT1, 2592, 0)]
        for n, (sr, share, k) in enumerate(pf):
            a = 64 * Opt.pf[0] + (64 * (Opt.pf[1] - Opt.pf[0]) * n) // (len(pf) - 1) - 14
            if sr is sWQ and Opt.pf_wq != "mall":
                if k == 0:
                    Rg(f"v_lshlrev_b32 {st[6]}, 6, {vPF}"); Rg(f"v_or_b32 {st[6]}, {st[6]}, {vPF}"); Rg(f"v_and_b32 {st[6]}, 0xffffe000, {st[6]}")
                    Rg(f"s_lshl2_add_u32 {sSrc}, {sJ}, {sWV_}"); Rg(f"s_mul_i32 {sSrc}, {sSrc}, {18 * 8192}"); Rg(f"s_lshl_b32 {sWr}, {sH}, 8"); Rg(f"s_add_u32 {sSrc}, {sSrc}, {sWr}")
                if k == 2: Rg(f"s_add_u32 {sSrc}, {sSrc}, {9 * 8192}")
                Rg(f"buffer_load_dword {st[8 + n]}, {st[6]}, {sr}, {sSrc} offen offset:{128 * (k & 1)} {Opt.pf_wq}", at=a, by=a + 1)
                continue
            if k == 0:
                Rg(f"s_mul_i32 {sSrc}, s2, {share}"); Rg(f"s_mul_i32 {sWr}, {sWV_}, 1152"); Rg(f"s_add_u32 {sSrc}, {sSrc}, {sWr}")
                if sr is sT1: Rg(f"s_sub_u32 {sSrc}, {sSrc}, 1152"); Rg([f"s_cmp_eq_u32 {sWV_}, 0", f"s_cselect_b32 {sSrc}, {OOB}, {sSrc}"])
            else: Rg(f"s_add_u32 {sSrc}, {sSrc}, 4608")
            Rg(f"buffer_load_dword {st[8 + n]}, {vPF}, {sr}, {sSrc} offen", at=a, by=a + 1)
    def k_pack(pp, rb):
        n = 2 * rb + pp; lo, hi = Kacc(2 * pp, rb), Kacc(2 * pp + 1, rb)
        for e, (x, y) in enumerate([(lo[0], lo[1]), (lo[2], lo[3]), (hi[0], hi[1]), (hi[2], hi[3])]):
            Rg(f"v_cvt_pk_bf16_f32 {x}, {x}, {y}"); Rg(f"v_accvgpr_write_b32 {Kpk(n)[e]}, {x}")
    def k_store(pp, rb, at):
        Rg(f"s_add_u32 {sSt}, {sK0}, {(rb >> 2) * SLOT + (rb & 3) * 4096 + 1024 * pp}", at=at - 1)
        Rg(f"buffer_store_dwordx4 {Kpk(2 * rb + pp)}, {vL16}, {sKV}, {sSt} offen {Opt.st_flags}", at=at, by=at + 3, tag="kv")
    work = [("k", 0, 0), ("k", 0, 1), ("v", 0, 0), ("k", 0, 2), ("v", 0, 1)] + [("k", pp, rb) for pp in range(2) for rb in range(8)][3:]
    work += [("v", cb, p_) for cb in range(4) for p_ in range(4)][2:]
    sched_st = [(Opt.st0 + Opt.st_gap * n, wk) for n, wk in enumerate(work)]
    def do_stores(upto):
        while sched_st and sched_st[0][0] < upto:
            at, wk = sched_st.pop(0)
            (k_store if wk[0] == "k" else v_store)(wk[1], wk[2], at)
    vn = [0]
    def v_store(cb, p_, at):
        d = tmp.sub(4 * (vn[0] & 1), 4); vn[0] += 1
        src = Ac(Vacc(cb, 2 * p_).i, 8)
        for e in range(4):
            t2 = vLane
            Rg(f"v_accvgpr_read_b32 {d[e]}, {src[2 * e]}", at=at - 10); Rg(f"v_accvgpr_read_b32 {t2}, {src[2 * e + 1]}", at=at - 10)
            Rg(f"v_cvt_pk_bf16_f32 {d[e]}, {d[e]}, {t2}", at=at - 10)
        Rg(f"s_add_u32 {sSt}, {sV0}, {(p_ >> 1) * SLOT + cb * 2048 + (p_ & 1) * 1024}", at=at - 1)
        Rg(f"buffer_store_dwordx4 {d}, {vL16}, {sKV}, {sSt} offen {Opt.st_flags}", at=at, by=at + 3, tag="kv")
    k_pack, k_store, v_store = background(k_pack), background(k_store), background(v_store)
    for s in range(8):
        buf = s & 1
        for hi in range(2):
            i = 1 + 2 * s + hi; base = (i % 5) * SLOT; g0 = Rg.nm
            if s < 7: act_reads(i, c_list(base + 16384, buf ^ 1, hi), g0 + 2, g0 + 46)
            else: act_reads(i, x_list(base + 16384, 0, hi), g0 + 2, g0 + 46)
            for cb in range(4):
                f = w_reads(i, rW[cb], base, 1024, 8192)
                if s == 7 and hi: Rg(f"v_xor_b32 {rW[cb]}, {sCH128}, {rW[cb]}")
                for rb in range(8):
                    for ks in range(2):
                        acc = Vacc(cb, rb) if hi else Kacc(cb, rb)
                        a, b = (Cf(buf, rb, ks), f.sub(4 * ks, 4)) if hi else (f.sub(4 * ks, 4), Cf(buf, rb, ks))
                        Rg(f"{MF} {acc}, {a}, {b}, {0 if (s == 0 and ks == 0) else acc}")
                if s == 7 and not hi and cb & 1:
                    for rb in range(8): k_pack(cb >> 1, rb)
                if s == 7 and hi and cb == 0:
                    do_stores(1024)
                if cb == 2: bar(i, g0 + 64 - LEAD, 64)
            if s == 6 and hi:
                for k in range(2): Rg(f"v_mov_b32 {rH[k]}, {st[4 + k]}"); W.w[rH[k].i] = 0
    p2 = Rg.nm
    zero = [Oacc(db, qb)[e] for db in range(8) for qb in range(4) for e in range(4)] + [Lacc(qb)[e] for qb in range(4) for e in range(4)]
    signalled = False
    for s in range(9):
        buf = s & 1
        for hi in range(2):
            i = 17 + 2 * s + hi; base = (i % 5) * SLOT; g0 = Rg.nm; n = 36 if hi else 64
            if sched_st: do_stores(g0 + n); last_store_slot = i
            if s < 8: act_reads(i, x_list(base + 16384, buf ^ 1, hi), g0 + 2, g0 + n - 18)
            else: t_work(i, hi, g0 + 1)
            if not sched_st and zero:
                for k, z in enumerate(zero): Rg(f"v_accvgpr_write_b32 {z}, 0", bg=True)
                zero = []
            if hi:
                for ks in range(2):
                    o = W.off(Rg, rH[ks], base); Rg(f"ds_read_b128 {Hf(ks)}, {rH[ks]} offset:{o}", **rdk(i))
            for cb in range(4 if hi else 8):
                f = w_reads(i, rA[cb], base, 512, 4096) if hi else w_reads(i, rW[cb], base, 1024, 8192)
                for qb in range(4):
                    for ks in range(2):
                        acc = Aacc(cb, qb) if hi else Qacc(cb, qb)
                        Rg(f"{MF} {acc}, {f.sub(4 * ks, 4)}, {Xfr(buf, qb, ks)}, {0 if (s == 0 and ks == 0) else acc}")
                if hi and cb < 2:
                    for ks in range(2):
                        Rg(f"{MF} {Hacc(cb)}, {f.sub(4 * ks, 4)}, {Hf(ks)}, {0 if (s == 0 and ks == 0) else Hacc(cb)}")
                if s == 8 and not hi:
                    for qb in range(4):
                        for e in range(4): Rg(f"v_mul_f32 {Qacc(cb, qb)[e]}, {sScale}, {Qacc(cb, qb)[e]}", bg=True)
                        if cb & 1:
                            lo, h_ = Qacc(cb - 1, qb), Qacc(cb, qb)
                            for e, (x, y) in enumerate([(lo[0], lo[1]), (lo[2], lo[3]), (h_[0], h_[1]), (h_[2], h_[3])]):
                                Rg(f"v_cvt_pk_bf16_f32 {lo[e]}, {x}, {y}", bg=True)
                if cb == (1 if hi else 5) and i < 34:
                    bar(i, g0 + n - LEAD, 64 if hi else 36)
                    if i + 4 == 33: t_setup2()
                    if not sched_st and not signalled and i >= last_store_slot + Opt.sig2:
                        signal2(i)
                        signalled = True; sig_slot = i
    assert signalled
    out = Rg.schedule(prev, Opt.verbose)
    idx_last_kv = max(n for n, x in enumerate(out) if getattr(x, "target", None) == "kv" and x.cls == "G")
    idx_cov = max(n for n, x in enumerate(out) if getattr(x, "target", None) == f"slot{sig_slot + 1}" and x.cls == "G")
    assert idx_last_kv < idx_cov
    return out

def att_dmas(n_static_pos=None):
    o = [f"s_add_u32 m0, {sWr}, {sW8k}"] + [dma(vL16, sKV, sSrc, 1024 * q, Opt.ld_flags) for q in range(4)]
    o += [f"s_add_u32 {sSrc2}, {sSrc}, 4096", f"s_add_u32 m0, m0, 4096"] + [dma(vL16, sKV, sSrc2, 1024 * q, Opt.ld_flags) for q in range(4)]
    o += [f"s_add_u32 {sSrc}, {sSrc}, {SLOT}"]
    return o

def flag_copies(j):
    return [f"s_cmp_eq_u32 {sJ}, {j}"] + [f"s_cselect_b32 {sAlF[k]}, {sAl[k]}, 0" for k in range(4)] + [f"s_cselect_b32 {sBeF[k]}, {sBe[k]}, 0" for k in range(4)]
def build_c(kb, qb, flagged):
    al, be = (sAlF, sBeF) if flagged else (sAl, sBe)
    return [f"v_add_f32 {nbt[kb]}, {be[kb]}, {negm(qb)[0]}"] + [f"v_fma_f32 {CA(kb)[e]}, {tri[e]}, {al[kb]}, {nbt[kb]}" for e in range(4)]
def init_ones(t): return [f"v_mov_b32 {t}, 0x3f803f80"] + [f"v_accvgpr_write_b32 {ones[e]}, {t}" for e in range(4)]

def k1_transition():
    a, b = et[0], et[1]
    p = init_ones(a)
    p += [f"v_bfe_u32 {a}, {vL16}, 4, 4", f"v_lshrrev_b32 {b}, 8, {vL16}", f"v_lshlrev_b32 {b}, 2, {b}", f"v_sub_u32 {a}, {a}, {b}", f"v_mov_b32 {b}, {NEGBIG:#x}"]
    for r in range(4):
        p += [f"v_cmp_le_i32 vcc, {r}, {a}", f"s_cmp_eq_u32 {sWV_}, {r}", f"s_cselect_b32 {sAl[r]}, 1.0, 0", f"v_cndmask_b32_e64 {tri[r]}, {b}, 0, vcc",
              f"s_cmp_lt_u32 {sWV_}, {r}", f"s_cselect_b32 {sBe[r]}, {NEGBIG:#x}, 0"]
    p += [f"s_lshl3_add_u32 {sCtxS}, {sJ}, {sWV_}", f"s_mul_i32 {sCtxS}, {sCtxS}, {CTX_RB}",
          f"s_sub_u32 {sT}, 15, {sJ}", f"s_lshl3_add_u32 {sCtxL}, {sT}, {sWV_}", f"s_mul_i32 {sCtxL}, {sCtxL}, {CTX_RB}",
          f"s_lshl_b32 {sT}, {sH}, 12", f"s_add_u32 {sCtxS}, {sCtxS}, {sT}", f"s_add_u32 {sCtxL}, {sCtxL}, {sT}",
          f"s_mov_b32 {sPt3[0]}, 0x55555555", f"s_mov_b32 {sPt3[1]}, 0x55555555",
          f"s_load_dwordx2 {sOut[0:2]}, s[0:1], 80"] + srd(sOut, 2048 * 1152)
    return p

CARRY = [regs(Kf(0, ks)) for ks in range(4)] + [regs(Vf(0, ks)) for ks in range(2)]
POLL_ALL = f"buffer_load_dword {vPl}, {V(29)}, {sDBG}, 0 offen sc1"

def att_step(name, qk, pv, par, cq=None, cmode=None, nxt=True, dmas=True, extra=None):
    Rg = Region(name)
    chains = [(kb, qb) for kb in range(4) for qb in qk]
    pvs = [(db, qb) for db in range(8) for qb in pv]
    NM = 4 * len(chains) + 2 * len(pvs) + 2 * len(pv)
    def softmax(sr, kb, qb, pr, us=(0, 1)):
        d = Pf(pr, qb, kb >> 1)
        for u in us:
            for e in (2 * u, 2 * u + 1): Rg(f"v_exp_f32 {sr[e]}, {sr[e]}")
            Rg(f"v_cvt_pk_bf16_f32 {d[2 * (kb & 1) + u]}, {sr[2 * u]}, {sr[2 * u + 1]}")
    if pv: softmax(Sr(3), 3, pv[-1], par ^ 1, us=(1,))
    if nxt and dmas:
        ds = att_dmas(); k = 0
        for x in ds:
            isd = x.startswith("buffer"); a = 1 + (k * (NM - 22)) // 8
            Rg(x, at=a if isd else a - 1, by=a + 3, wr=[('x', "iss")] if isd else []); k += isd
    if extra: extra(Rg, NM)
    seen_k, seen_v = {0}, {0}; np_ = 0; ring = (4 - len(chains)) % 4
    def pv_chain(db, qb):
        if db not in seen_v:
            seen_v.add(db)
            for ks in range(2): Rg(f"ds_read_b128 {Vf(db, ks)}, {vRd} offset:{16384 + (2 * db + ks) * 1024}", rd=[('x', "dsq")])
        for ks in range(2): Rg(f"{MF} {Oacc(db, qb)}, {Vf(db, ks)}, {Pf(par ^ 1, qb, ks)}, {Oacc(db, qb)}")
    for n, (kb, qb) in enumerate(chains):
        if kb not in seen_k:
            seen_k.add(kb)
            for ks in range(4): Rg(f"ds_read_b128 {Kf(kb, ks)}, {vRd} offset:{(4 * kb + ks) * 1024}", rd=[('x', "dsq")])
        c = negm(qb)
        if qb == cq:
            c = CA(kb)
            if cmode:
                for x in build_c(kb, qb, cmode == "flag"): Rg(x)
        sr = Sr(ring + n)
        for ks in range(4): Rg(f"{MF} {sr}, {Kf(kb, ks)}, {Qf(qb, ks)}, {c if ks == 0 else sr}")
        softmax(sr, kb, qb, par, us=(0, 1) if n < len(chains) - 1 else (0,))
        want = (len(pvs) * (n + 1)) // len(chains)
        while np_ < want: pv_chain(*pvs[np_]); np_ += 1
    while np_ < len(pvs): pv_chain(*pvs[np_]); np_ += 1
    for qb in pv:
        for ks in range(2): Rg(f"{MF} {Lacc(qb)}, {ones}, {Pf(par ^ 1, qb, ks)}, {Lacc(qb)}")
    if nxt:
        pos = NM - 13
        Rg([f"s_mov_b32 {sWr}, {sPrev}"], by=pos - 4); Rg([f"s_mov_b32 {sPrev}, {sRd}"], by=pos - 3)
        Rg([f"s_add_u32 {sRd}, {sRd}, {SLOT}"], by=pos - 2)
        Rg([f"s_cmp_eq_u32 {sRd}, {5 * SLOT}", f"s_cselect_b32 {sRd}, 0, {sRd}"], by=pos - 1)
        Rg([f"s_waitcnt vmcnt({16 if dmas else 0})", "s_barrier"], at=pos, by=pos, pin=True, rd=[('x', "iss")], wr=[('x', "bar")])
        Rg(f"v_add_u32 {vRd}, {sRd}, {vL16}", by=pos)
        for ks in range(4): Rg(f"ds_read_b128 {Kf(0, ks)}, {vRd} offset:{ks * 1024}", rd=[('x', "bar")], wr=[('x', "dsq")], by=pos + 1 + ks)
        for ks in range(2): Rg(f"ds_read_b128 {Vf(0, ks)}, {vRd} offset:{16384 + ks * 1024}", rd=[('x', "bar")], wr=[('x', "dsq")], by=pos + 6 + ks)
    out = Rg.schedule(verbose=Opt.verbose)
    out, left = fix_waits(out, CARRY)
    assert left == [sorted(c) for c in CARRY][len(CARRY) - len(left):] or not nxt, (name, left)
    return texts(out)

def gate_work(qbs, first):
    def f(Rg, NM):
        Rg.bg = True
        if first:
            Rg(f"v_bfe_u32 {et[0]}, {vL16}, 2, 6"); Rg(f"v_add_u32 {et[0]}, 192, {et[0]}"); Rg(f"s_mov_b32 {sU}, {fbits(LOG2E):#x}")
        for qb in qbs:
            o = omg[qb]
            Rg(f"v_accvgpr_read_b32 {o}, {Aacc(3, qb)[0]}"); Rg(f"v_cvt_pk_bf16_f32 {o}, 0, {o}")
            Rg(f"ds_bpermute_b32 {o}, {et[0]}, {o}", rd=[('x', "dsq")])
            Rg(f"v_mul_f32 {o}, {sU}, {o}", at=40); Rg(f"v_exp_f32 {o}, {o}"); Rg(f"v_add_f32 {o}, 1.0, {o}"); Rg(f"v_rcp_f32 {o}, {o}")
        Rg.bg = False
    return f

def att_epilogue(qbs, sbase):
    p = ["s_nop 7"]
    for n, qb in enumerate(qbs):
        l, f = et[0], et[2:4]
        p += [f"v_accvgpr_read_b32 {l}, {Lacc(qb)[0]}", f"v_cmp_nge_f32 vcc, {fbits(2.0 ** 100):#x}, {l}",
              f"v_rcp_f32 {f[0]}, {l}", f"s_or_b64 {sFail}, {sFail}, vcc", f"v_mul_f32 {f[0]}, {f[0]}, {omg[qb]}"]
        if n: p += [f"s_add_u32 {sSt}, {sbase}, {4 * CTX_RB}"]
        for pp in range(4):
            t = et.sub(4 + 8 * (pp & 1), 8)
            for e in range(8): p.append(f"v_accvgpr_read_b32 {t[e]}, {Oacc(2 * pp + (e >> 2), qb)[e & 3]}")
            for e in range(4): p.append(f"v_pk_mul_f32 {t.sub(2 * e, 2)}, {t.sub(2 * e, 2)}, {f} op_sel_hi:[1,0]")
            for e in range(4): p.append(f"v_cvt_pk_bf16_f32 {t[e]}, {t[2 * e]}, {t[2 * e + 1]}")
            p.append(tagged(f"buffer_store_dwordx4 {t[0:4]}, {vL16}, {sCTX}, {sSt if n else sbase} offen offset:{1024 * pp} {Opt.st_flags}", "ctx"))
    return p

def rowmax_all(x, t):
    return [f"v_mov_b32 {t}, {x}", f"v_permlane32_swap_b32 {x}, {t}", f"v_max_f32 {x}, {x}, {t}",
            f"v_mov_b32 {t}, {x}", f"v_permlane16_swap_b32 {x}, {t}", f"v_max_f32 {x}, {x}, {t}"]

def k1_attention(A):
    A.label("K1_ATT")
    p = [f"s_mov_b32 {sRd}, 0", f"s_mov_b32 {sPrev}, {4 * SLOT}", f"v_mov_b32 {vRd}, {vL16}", f"v_mov_b32 {et[3]}, 0"] + flag_copies(0)
    p += ["s_waitcnt vmcnt(8) lgkmcnt(0)", "s_barrier"]
    p += [f"ds_read_b128 {Kf(0, ks)}, {vRd} offset:{ks * 1024}" for ks in range(4)]
    p += [f"ds_read_b128 {Vf(0, ks)}, {vRd} offset:{16384 + ks * 1024}" for ks in range(2)]
    p += [f"s_cmp_lg_u32 {sRedo}, 0"]
    A(texts(plain(p))); A("s_cbranch_scc1 K1_HAVEM_R")
    p = [f"v_mul_f32 {CA(0)[e]}, {sAlF[0]}, {tri[e]}" for e in range(4)] + ["s_waitcnt lgkmcnt(2)"]
    for qb in range(4):
        for ks in range(4): p.append(f"{MF} {Sr(qb)}, {Kf(0, ks)}, {Qf(qb, ks)}, {(CA(0) if qb == 0 else 0) if ks == 0 else Sr(qb)}")
    for qb in range(4):
        s_ = Sr(qb); p += [f"v_max3_f32 {s_[0]}, {s_[0]}, {s_[1]}, {s_[2]}", f"v_max_f32 {s_[0]}, {s_[0]}, {s_[3]}"]
    seqs = [rowmax_all(Sr(qb)[0], Sr(qb)[1]) for qb in range(4)]
    for k in range(6): p += [sq[k] for sq in seqs]
    for qb in range(4): p += [f"v_sub_f32 {negm(qb)[e]}, 0, {Sr(qb)[0]}" for e in range(4)]
    d2 = att_dmas() + [f"s_add_u32 {sWr}, {sWr}, {SLOT}"]
    A(texts(plain(weave(p[:21], d2[:6]) + weave(p[21:], d2[6:]))))
    A.label("K1_HAVEM")
    A(stamp("att_start"))
    A(att_step("E0", [0, 1, 2, 3], [], 0, cq=0, cmode="flag"))
    def loop(tag, qs, cq):
        A(f"s_cmp_eq_u32 {sCnt}, 0"); A(f"s_cbranch_scc1 K1_{tag}_END")
        A(".p2align 3"); A.label(f"K1_{tag}")
        A(att_step(tag + "o", qs, qs, 1, cq=cq))
        A(f"s_cmp_eq_u32 {sCnt}, 1"); A(f"s_cbranch_scc1 K1_{tag}_MASK"); A.label(f"K1_{tag}_BACK")
        A(att_step(tag + "e", qs, qs, 0, cq=cq))
        A(f"s_sub_u32 {sCnt}, {sCnt}, 1"); A(f"s_cmp_lg_u32 {sCnt}, 0"); A(f"s_cbranch_scc1 K1_{tag}")
        A.label(f"K1_{tag}_END")
    A([f"v_mov_b32 {et[1]}, 1", f"s_mov_b32 {sCnt}, {sJ}", f"buffer_atomic_add {et[1]}, {vSig}, {sDBG}, {sH4} offen sc1"])
    loop("LB", [0, 1, 2, 3], 0)
    A(stamp("both_done"))
    def o1(Rg, NM):
        gate_work([0, 1, 2], True)(Rg, NM); Rg(flag_copies(7)[:5], bg=True, by=NM - 20); Rg(flag_copies(7)[:1] + flag_copies(7)[5:], bg=True, by=NM - 10)
    A(att_step("O1", [1, 2, 3], [0, 1, 2, 3], 1, cq=1, cmode="mask", extra=gate_work([0, 1, 2], True)))
    A(flag_copies(7))
    A(att_step("E1", [2, 3], [1, 2, 3], 0, cq=2, cmode="flag", extra=gate_work([3], False)))
    A(texts(plain(att_epilogue([0, 1], sCtxS))))
    A(stamp("short_done"))
    A([f"s_sub_u32 {sCnt}, 14, {sJ}", f"s_sub_u32 {sCnt}, {sCnt}, {sJ}"])
    loop("LS", [2, 3], 2)
    A(stamp("single_done"))
    def o2(Rg, NM):
        Rg(f"v_lshrrev_b32 {V(29)}, 2, {vL16}"); Rg(POLL_ALL, wr=[('x', "iss")], by=4)
    A(att_step("O2", [3], [2, 3], 1, cq=3, cmode="mask", dmas=False, extra=o2))
    A(att_step("E2", [], [3], 0, nxt=False))

def k1_slow_paths(A):
    for tag, qb in (("LB", 0), ("LS", 2)):
        A.label(f"K1_{tag}_MASK"); A(texts(plain(["s_nop 1"] + [x for kb in range(4) for x in build_c(kb, qb, False)] + ["s_nop 1"]))); A(f"s_branch K1_{tag}_BACK")
    A.label("K1_HAVEM_R"); A(texts(plain(att_dmas() + [f"s_add_u32 {sWr}, {sWr}, {SLOT}"]))); A("s_branch K1_HAVEM")
    A.label("K1_REDO")
    thr = V(64, 4); mxs = V(68, 4); kf = V(72, 16); sc = V(88, 4); rel = V(92); nb = V(93)
    p = [f"s_mov_b32 {sRedo}, 1", "s_waitcnt vmcnt(0) lgkmcnt(0)", "s_barrier",
         f"v_lshrrev_b32 {rel}, 4, {vL16}", f"v_and_b32 {thr[0]}, 15, {rel}", f"v_lshrrev_b32 {rel}, 4, {rel}", f"v_lshlrev_b32 {rel}, 2, {rel}",
         f"v_sub_u32 {rel}, {thr[0]}, {rel}", f"s_lshl_b32 {sU}, {sWV_}, 4", f"v_add_u32 {rel}, {sU}, {rel}",
         f"s_lshl_b32 {sU}, {sJ}, 7", f"s_sub_u32 {sU2}, {15 * 128}, {sU}",
         f"v_add_u32 {thr[0]}, {sU}, {rel}", f"v_add_u32 {thr[1]}, 64, {thr[0]}", f"v_add_u32 {thr[2]}, {sU2}, {rel}", f"v_add_u32 {thr[3]}, 64, {thr[2]}",
         f"v_mov_b32 {nb}, {NEGBIG:#x}"] + [f"v_mov_b32 {mxs[qb]}, {nb}" for qb in range(4)]
    p += [f"s_mov_b32 {sCnt}, 0", f"s_add_u32 {sU2}, {sU2}, 128"]
    A(texts(plain(p)))
    A.label("K1_REDO_L")
    p = [f"s_lshr_b32 {sT}, {sCnt}, 6", f"s_lshl_b32 {sT}, {sT}, 15", f"s_bfe_u32 {sU}, {sCnt}, 0x20004", f"s_lshl_b32 {sU}, {sU}, 12", f"s_add_u32 {sT}, {sT}, {sU}"]
    p += [f"buffer_load_dwordx4 {kf.sub(4 * ks, 4)}, {vL16}, {sKV}, {sT} offen offset:{1024 * ks} {Opt.ld_flags}" for ks in range(4)] + ["s_waitcnt vmcnt(0)"]
    for qb in range(4):
        p += [f"{MF} {sc}, {kf.sub(4 * ks, 4)}, {Qf(qb, ks)}, {0 if ks == 0 else sc}" for ks in range(4)]
        p += [f"v_subrev_u32 {rel}, {sCnt}, {thr[qb]}"]
        for e in range(4):
            p += [f"v_cmp_le_i32 vcc, {e}, {rel}", f"v_cndmask_b32 {sc[e]}, {nb}, {sc[e]}, vcc", f"v_max_f32 {mxs[qb]}, {mxs[qb]}, {sc[e]}"]
    p += [f"s_add_u32 {sCnt}, {sCnt}, 16", f"s_cmp_lt_u32 {sCnt}, {sU2}"]
    A(texts(plain(p))); A("s_cbranch_scc1 K1_REDO_L")
    p = []
    for qb in range(4):
        p += rowmax_all(mxs[qb], rel) + [f"v_sub_f32 {negm(qb)[e]}, 0, {mxs[qb]}" for e in range(4)]
    p += [f"v_accvgpr_write_b32 {Oacc(db, qb)[e]}, 0" for db in range(8) for qb in range(4) for e in range(4)]
    p += [f"v_accvgpr_write_b32 {Lacc(qb)[e]}, 0" for qb in range(4) for e in range(4)] + init_ones(rel)
    p += [f"s_mov_b32 {sSrc}, {sW8k}", f"s_mov_b32 {sWr}, 0"]
    for n in range(2): p += att_dmas() + [f"s_add_u32 {sWr}, {sWr}, {SLOT}"]
    A(texts(plain(p))); A("s_branch K1_ATT")
    emit_spins(A)

def k1_outproj(A):
    sSg, sTl, soa, sob, sob8, sTheir, sXo = soC1, soC2, soX1, soX2, soA0, soA1, sV0
    sXB = sT0
    t0, t1 = sU, sU2
    va = V(4, 2); vam = V(6, 2); ra = V(2); sa = V(8, 3); sh_ = V(12, 2); pos = V(14); so_ = V(15); vFo = V(19)
    BS = 36864; STG = 3 * BS
    fa = lambda kk, r: Ac(8 * (kk % 12) + 4 * r, 4)
    acc = lambda u, r: V(160 + 8 * u + 4 * r, 4)
    def ldB(G):
        o = []; lb = (G % 4) * BS
        if G == 8: o += [f"s_mul_i32 {t0}, {sSg}, {28 * WT_KS}", f"s_sub_u32 {t0}, {96 * WT_KS}, {t0}", f"s_add_u32 {sob}, {sob}, {t0}", f"s_add_u32 {sob8}, {sob8}, {t0}"]
        if G == 9:
            o += [f"s_lshr_b32 {t0}, {sSg}, 1", f"s_lshl_b32 {t1}, {sSg}, 2", f"s_sub_u32 {t0}, {t0}, {t1}", f"s_add_u32 {t0}, {t0}, 12", f"s_mul_i32 {t0}, {t0}, {WT_KS}",
                  f"s_add_u32 {sob}, {sob}, {t0}", f"s_add_u32 {sob8}, {sob8}, {t0}", (f"s_cmp_eq_u32 {sWV_}, 0", f"s_cselect_b32 {sob8}, {sob8}, {OOB}")]
        for kq in range(4 if G < 9 else 1):
            o += [f"s_add_u32 m0, {sW2k}, {lb + 8192 * kq}"] + [dma(vL16, sWT, sob, 1024 * q, Opt.ld_flags) for q in range(2)] + [f"s_add_u32 {sob}, {sob}, {WT_KS}"]
        o += [f"s_add_u32 m0, {sW1k}, {lb + 32768}", dma(vL16, sWT, sob8, 0, Opt.ld_flags), f"s_add_u32 {sob8}, {sob8}, {4 * WT_KS}"]
        return o
    def ldA(G):
        o = []
        if G == 8: o += [f"s_lshl_b32 {soa}, {sSg}, 12", f"s_add_u32 {soa}, {soa}, {128 * 1024}"]
        if G == 9: o += [f"s_lshr_b32 {soa}, {sSg}, 1", f"s_lshl_b32 {soa}, {soa}, 10", f"s_add_u32 {soa}, {soa}, {144 * 1024}"]
        for kq in range(4 if G < 9 else 1):
            o += [f"buffer_load_dwordx4 {fa(4 * G + kq, r)}, {(va if G < 9 else vam)[r]}, {sCTX}, {soa} offen offset:{1024 * kq} {Opt.ld_flags}" for r in range(2)]
        return o + [f"s_add_u32 {soa}, {soa}, 4096"]
    T = lambda lst, tag: [tagged(x, tag) for x in lst]
    poll = f"buffer_load_dword {vPl}, {vFo}, {sFL}, {sTheir} offen sc1"
    def publish(val): return [f"v_mov_b32 {V(31)}, {val}", f"buffer_store_dword {V(31)}, {vSig}, {sFL}, {sMy} offen {Opt.st_flags}"]
    p = ["s_waitcnt lgkmcnt(0)", "s_barrier",
         f"s_lshr_b32 {sSg}, {sH}, 3", f"s_and_b32 {t0}, {sH}, 3", f"s_mul_i32 {t0}, {t0}, 9",
         f"s_mul_i32 {sob8}, {sSg}, {32 * 36}", f"s_add_u32 {sob8}, {sob8}, {t0}",
         f"s_add_u32 {t1}, {sWV_}, {sSg}", f"s_and_b32 {t1}, {t1}, 3", f"s_lshl1_add_u32 {sob}, {t1}, {sob8}", f"s_lshl_b32 {sob}, {sob}, 10",
         f"s_mul_i32 {t1}, {sWV_}, 36", f"s_add_u32 {sob8}, {sob8}, {t1}", f"s_add_u32 {sob8}, {sob8}, 8", f"s_lshl_b32 {sob8}, {sob8}, 10"]
    p += check("ALL", vPl, 16, sPt3, POLL_ALL)
    p += att_epilogue([2, 3], sCtxL)[1:] + stamp("att_done")
    a, b, c, d = V(20), V(21), V(22), V(23)
    q = [f"s_mov_b32 {sStg}, {STG}",
         f"v_bfe_u32 {a}, {vL16}, 4, 4", f"v_lshrrev_b32 {b}, 8, {vL16}", f"s_lshl_b32 {t0}, {sWV_}, 4", f"s_add_u32 {t0}, {t0}, 16",
         f"v_add_u32 {c}, {t0}, {a}", f"v_mul_u32_u24 {c}, 144, {c}", f"v_add_u32 {c}, {sStg}, {c}", f"v_lshl_add_u32 {sa[1]}, {b}, 3, {c}",
         f"s_lshr_b32 {t0}, {sCH128}, 1",
         f"v_add_u32 {sa[0]}, {t0}, {sa[1]}", f"v_subrev_u32 {sa[2]}, {t0}, {sa[1]}",
         f"s_and_b32 {t1}, {sWV_}, 1", f"s_mul_i32 {t1}, {t1}, {144 * 144}", f"s_add_u32 {t1}, {t1}, {sStg}",
         f"v_mul_u32_u24 {d}, 144, {a}", f"v_lshl_add_u32 {d}, {b}, 3, {d}", f"v_add_u32 {sh_[1]}, {t1}, {d}", f"v_add_u32 {sh_[0]}, {t0}, {sh_[1]}"]
    t4 = [V(32 + 4 * k, 4) for k in range(4)]; n = 0
    items = [(Aacc(sl, qb), sa[sl if sl != 3 else 1], 32 * sl + ((qb >> 1) * 144 + (qb & 1) * 64) * 144) for sl in range(4) for qb in range(4)]
    items += [(Hacc(sl), sh_[sl], 32 * sl) for sl in range(2)]
    for ac_, ad, off in items:
        t = t4[n & 3]; n += 1
        q += [f"v_accvgpr_read_b32 {t[e]}, {ac_[e]}" for e in range(4)]
        q += [f"v_cvt_pk_bf16_f32 {t[0]}, {t[0]}, {t[1]}", f"v_cvt_pk_bf16_f32 {t[1]}, {t[2]}, {t[3]}"]
        w_ = f"ds_write_b64 {ad}, {t[0:2]} offset:{off}"
        if ac_.i == Hacc(1).i:
            q += [f"s_cmp_eq_u32 {sCH128}, 0", "s_cselect_b64 exec, -1, 0", w_, "s_mov_b64 exec, -1"]
        else: q += [w_]
    q += [f"s_cmp_lg_u64 {sFail}, 0", f"s_cselect_b32 {sT}, 1, 0", f"v_mov_b32 {a}, {sT}", f"s_lshl2_add_u32 {t0}, {sWV_}, {sStg}", f"v_mov_b32 {b}, {t0}",
          f"ds_write_b32 {b}, {a} offset:{288 * 144}", f"v_mov_b32 {b}, {sStg}"]
    p += weave(q, T(ldB(0), "g0"))
    p += ["WAITVM ctx", "s_waitcnt lgkmcnt(0)", "s_barrier", f"ds_read_b128 {V(24, 4)}, {b} offset:{288 * 144}"]
    p += [f"s_and_b32 {t0}, {sWV_}, 1", f"s_lshl_b32 {t0}, {t0}, 6", f"v_lshrrev_b32 {pos}, 4, {vL16}", f"v_add_u32 {pos}, {t0}, {pos}",
          f"s_lshr_b32 {t1}, {sWV_}, 1", f"s_mul_i32 {sT}, {t1}, 144", f"s_add_u32 {sT}, {sT}, 2",
          f"v_add_u32 {ra}, {sT}, {pos}", f"v_mul_u32_u24 {ra}, 144, {ra}", f"v_add_u32 {ra}, {sStg}, {ra}",
          f"v_or3_b32 {V(24)}, {V(24)}, {V(25)}, {V(26)}", f"v_or_b32 {V(24)}, {V(24)}, {V(27)}", f"v_readfirstlane_b32 {sT}, {V(24)}",
          f"s_andn2_b32 {sT}, {sT}, {sRedo}", "s_cbranch_scc1 K1_REDO"]
    p += publish(2) + stamp("published")
    kv = lambda w: V(32 + 12 * w, 12); qq = V(128, 12); lg = V(140, 8); ph = V(148, 8)
    o = [V(128 + e) for e in range(12)] + [V(156 + e) for e in range(4)] + [V(17), V(18)]
    gg, mx, sm = V(8), V(9), V(10)
    q = []
    for u in range(3): q.append(f"ds_read_b128 {qq.sub(4 * u, 4)}, {ra} offset:{14 * 144 + 80 + 16 * u}")
    for w in range(8):
        for u in range(3): q.append(f"ds_read_b128 {kv(w).sub(4 * u, 4)}, {ra} offset:{(14 - 2 * w) * 144 + 16 * u}")
    q += [f"s_sub_u32 {sT}, 15, {sJ}", f"s_cmp_eq_u32 {t1}, 0", f"s_cselect_b32 {sT}, {sJ}, {sT}", f"s_lshl_b32 {sT}, {sT}, 7",
          f"v_add_u32 {pos}, {sT}, {pos}", f"v_lshrrev_b32 {so_}, 4, {pos}", f"s_mov_b32 {t0}, {CTX_RB}", f"v_mul_lo_u32 {so_}, {so_}, {t0}",
          f"v_and_b32 {d}, 0xf0, {vL16}", f"v_add_u32 {so_}, {so_}, {d}"]
    q += [f"s_sub_u32 {sTl}, 15, {sJ}", f"s_bitcmp1_b32 {sH}, 2", f"s_cselect_b32 {sTl}, {sTl}, {sJ}",
          f"s_lshl2_add_u32 {t0}, {sTl}, {sWV_}", f"s_mul_i32 {t0}, {t0}, {2 * CTX_RB}", f"v_add_u32 {va[0]}, {t0}, {vL16}", f"v_add_u32 {va[1]}, {CTX_RB}, {va[0]}",
          f"v_lshrrev_b32 {d}, 9, {vL16}", f"s_and_b32 {t0}, {sSg}, 1", f"v_cmp_eq_u32 vcc, {t0}, {d}", f"v_mov_b32 {d}, {OOB}",
          f"s_lshl_b32 {soa}, {sSg}, 15", f"v_cndmask_b32 {vam[0]}, {d}, {va[0]}, vcc", f"v_cndmask_b32 {vam[1]}, {d}, {va[1]}, vcc",
          f"s_lshl2_add_u32 {sTheir}, {sJ}, {sSg}", f"s_lshl_b32 {sTheir}, {sTheir}, 10", f"v_bfe_u32 {vFo}, {vL16}, 4, 3", f"v_lshlrev_b32 {vFo}, 7, {vFo}",
          f"s_add_u32 {sXB[0]}, {sFL[0]}, {WS_X - WS_FL}", f"s_addc_u32 {sXB[1]}, {sFL[1]}, 0", f"s_mov_b32 {sXB[2]}, {256 * X_WG}"]
    for w in range(8): q.append(f"v_mov_b32 {lg[w]}, 0")
    for w0 in (0, 4):
        for e in range(9):
            for w in range(w0, w0 + 4): q.append(f"v_dot2c_f32_bf16 {lg[w]}, {qq[e]}, {kv(w)[e]}")
        for w in range(w0, w0 + 4):
            for u in range(2): q.append(f"ds_read_b128 {kv(w).sub(4 * u, 4)}, {ra} offset:{(14 - 2 * w) * 144 + 48 + 16 * u}")
    q += [f"s_mov_b32 {t0}, {fbits(-LOG2E):#x}", f"s_mov_b32 {sT}, {fbits(18 ** -0.5 * LOG2E):#x}",
          f"v_lshlrev_b32 {gg}, 16, {qq[10]}", f"v_mul_f32 {gg}, {t0}, {gg}", f"v_exp_f32 {gg}, {gg}", f"v_mov_b32 {mx}, {NEGBIG:#x}",
          f"v_add_f32 {gg}, 1.0, {gg}", f"v_rcp_f32 {gg}, {gg}"]
    for w in range(8):
        q += ([f"v_cmp_le_u32 vcc, {2 * w}, {pos}"] if w else []) + [f"v_mul_f32 {lg[w]}, {sT}, {lg[w]}", f"v_mov_b32 {o[2 * w]}, 0", f"v_mov_b32 {o[2 * w + 1]}, 0"]
        if w: q += [f"v_cndmask_b32 {lg[w]}, {mx}, {lg[w]}, vcc"]
    q += [f"v_max3_f32 {mx}, {lg[0]}, {lg[1]}, {lg[2]}", f"v_max3_f32 {sm}, {lg[3]}, {lg[4]}, {lg[5]}",
          f"v_max3_f32 {mx}, {mx}, {lg[6]}, {lg[7]}", f"v_max_f32 {mx}, {mx}, {sm}"]
    for w in range(8): q += [f"v_sub_f32 {lg[w]}, {lg[w]}, {mx}"]
    for w in range(8): q += [f"v_exp_f32 {lg[w]}, {lg[w]}"]
    q += [f"v_add_f32 {sm}, {lg[0]}, {lg[1]}"] + [f"v_add_f32 {sm}, {sm}, {lg[w]}" for w in range(2, 8)] + [f"v_rcp_f32 {sm}, {sm}"]
    q += [f"v_mov_b32 {o[16]}, 0", f"v_mov_b32 {o[17]}, 0"]
    for w in range(8): q += [f"v_mul_f32 {lg[w]}, {lg[w]}, {sm}"]
    for w in range(8): q += [f"v_cvt_pk_bf16_f32 {ph[w]}, 0, {lg[w]}"]
    for w in range(8): q += [f"v_lshrrev_b32 {lg[w]}, 16, {ph[w]}"]
    for w in range(8):
        vp = [kv(w)[10], kv(w)[11]] + [kv(w)[e] for e in range(7)]
        for e in range(9): q += [f"v_dot2c_f32_bf16 {o[2 * e]}, {vp[e]}, {lg[w]}", f"v_dot2c_f32_bf16 {o[2 * e + 1]}, {vp[e]}, {ph[w]}"]
    for e in range(18): q.append(f"v_mul_f32 {o[e]}, {gg}, {o[e]}")
    pk = V(104, 12)
    for e in range(9): q.append(f"v_cvt_pk_bf16_f32 {pk[e]}, {o[2 * e]}, {o[2 * e + 1]}")
    q += [f"s_lshl_b32 {t0}, {sH}, 9", f"s_add_u32 {t0}, {t0}, {128 * 1024}",
          f"s_lshr_b32 {t1}, {sH}, 2", f"s_lshl_b32 {t1}, {t1}, 8", f"s_and_b32 {sT}, {sH}, 3", f"s_lshl2_add_u32 {t1}, {sT}, {t1}",
          f"s_add_u32 {t1}, {t1}, {144 * 1024}"]
    cut = (len(q) * Opt.poll3_pct) // 100
    p += weave(q[:cut], T(ldB(1), "g1") + T(ldB(2), "g2")) + [tagged(poll, "p1")] + q[cut:]
    p += [tagged(x, "oa") for x in (f"buffer_store_dwordx4 {pk[0:4]}, {so_}, {sCTX}, {t0} offen {Opt.st_flags}",
          f"buffer_store_dwordx4 {pk[4:8]}, {so_}, {sCTX}, {t0} offen offset:256 {Opt.st_flags}", f"buffer_store_dword {pk[8]}, {so_}, {sCTX}, {t1} offen {Opt.st_flags}")]
    p += stamp("abranch_done")
    p += ["WAITVM p1"] + check("CTX", vPl, 2, "exec", poll) + stamp("ctx_ready")
    p += T(ldA(0), "g0") + T(ldA(1), "g1")
    rB = V(8, 3)
    p += [f"v_mov_b32 {rB[0]}, {vL16}", f"v_add_u32 {rB[1]}, 0x10000, {vL16}", f"v_add_u32 {rB[2]}, 0x20000, {vL16}"]
    p += ["WAITVM g0", "s_barrier"] + publish(3)
    pre = plain(p)
    Rg = Region("outproj"); nb = [0]
    xt = [V(64 + 4 * k, 4) for k in range(4)]; nx = [0]
    def send(u):
        d = xt[nx[0] % 4]; nx[0] += 1
        for e in range(4): Rg(f"v_cvt_pk_bf16_f32 {d[e]}, {acc(u, e >> 1)[2 * (e & 1)]}, {acc(u, e >> 1)[2 * (e & 1) + 1]}")
        if u % 2 == 0:
            if u < 8: Rg(f"s_mov_b32 {t1}, {u >> 1}")
            else: Rg(f"s_sub_u32 {t1}, {sWV_}, {sSg}"); Rg(f"s_and_b32 {t1}, {t1}, 3")
            Rg(f"s_lshl3_add_u32 {t0}, {t1}, {sH}"); Rg(f"s_and_b32 {t0}, {t0}, 31"); Rg(f"s_lshl_b32 {sXo}, {sJ}, 5"); Rg(f"s_add_u32 {t0}, {t0}, {sXo}")
            Rg(f"s_mul_i32 {t0}, {t0}, 3"); Rg(f"s_sub_u32 {t0}, {t0}, {t1}"); Rg(f"s_add_u32 {t0}, {t0}, 3"); Rg(f"s_lshl2_add_u32 {t0}, {t0}, {sWV_}")
            Rg(f"s_mul_i32 {sXo}, {t0}, 3072")
            if u == 8: Rg([f"s_cmp_eq_u32 {t1}, 0", f"s_cselect_b32 {sXo}, {OOB}, {sXo}"])
        Rg(f"buffer_store_dwordx4 {d}, {vL16}, {sXB}, {sXo} offen offset:{2048 if u == 8 else 1024 * (u & 1)} {Opt.st_flags}")
    def issue(lst, tag, g0, g1, tok):
        nd = sum(1 for x in lst if isinstance(x, str) and x.startswith("buffer")); k = 0
        for x in lst:
            isd = isinstance(x, str) and x.startswith("buffer"); a_ = g0 + (k * (g1 - g0)) // nd
            Rg(x if isinstance(x, str) else list(x), at=a_ if isd else a_ - 2, by=a_ + 2, tag=tag, rd=tok if isd else [], wr=[('x', "i" + tag)] if isd else []); k += isd
    def bar(G, at):
        chk = check("OA", vPl, 3, "exec", poll) if G == 5 else []
        wr = [('x', f"bar{G}")] + [r for kq in range(4 if G < 8 else 1) for rr in range(2) for r in regs(fa(4 * G + 4 + kq, rr))]
        Rg([f"WAITVM g{G + 1}" + (" p2" if chk else "")] + chk + ["s_barrier"], at=at, by=at, pin=True, rd=[('x', f"ig{G + 2}")], wr=wr)
    for G in range(9):
        g0 = Rg.nm; tok = [('x', f"bar{G - 1}")]
        if G == 4: Rg(poll, at=g0 - 9, by=g0 - 8, tag="p2", rd=tok, wr=[('x', "ig6")])
        if G + 2 <= 9:
            lA, lB = ldA(G + 2), (ldB(G + 2) if G else [])
            issue(lB, f"g{G + 2}", g0 - 9, g0 + 56, tok); issue(lA, f"g{G + 2}", g0 + 1, g0 + 58, tok)
        for kp in range(2):
            last = G == 8 and kp == 1
            kqs = [(G, 2 * kp), (G, 2 * kp + 1)] + ([(9, 0)] if last else [])
            for u in ([2, 3, 4, 5, 6, 7, 8, 0, 1] if last else range(9)):
                fr = []
                for (g_, kq) in kqs:
                    f = V(104 + 4 * (nb[0] % 10), 4); nb[0] += 1; fr.append(f)
                    ad = (g_ % 4) * BS + (8192 * kq + 1024 * u if u < 8 else 32768 + 1024 * kq)
                    Rg(f"ds_read_b128 {f}, {rB[ad >> 16]} offset:{ad & 0xffff}", rd=[('x', f"bar{g_ - 1}")])
                for r in range(2):
                    for f, (g_, kq) in zip(fr, kqs):
                        Rg(f"{MF} {acc(u, r)}, {f}, {fa(4 * g_ + kq, r)}, {0 if (g_ == 0 and kq == 0) else acc(u, r)}")
                if last and u >= 2: send(u)
                if G < 8 and kp == 1 and u == 5: bar(G, g0 + 72 - 11)
                if G == 8 and kp == 0 and u == 5: bar(G, g0 + 36 - 11)
    body = pre + Rg.schedule(pre, Opt.verbose)
    p = stamp("op_loop")
    pollx = f"buffer_load_dword {vPl}, {vFo}, {sFL}, {sTheir} offen sc1"
    rx = lambda s_, f: V(32 + 12 * s_ + 4 * f, 4)
    p += [f"v_mov_b32 {V(31)}, 1", f"v_mov_b32 {d}, {OOB}", f"v_cmp_eq_u32 vcc, 0, {vL16}", f"s_lshl2_add_u32 {t0}, {sWV_}, {sMy}", f"v_cndmask_b32_e64 {d}, {d}, 4, vcc",
          f"v_lshrrev_b32 {vFo}, 4, {vL16}", f"v_min_u32 {vFo}, 2, {vFo}", f"s_add_u32 {t1}, {sH}, 8", f"v_lshl_add_u32 {vFo}, {vFo}, 3, {t1}",
          f"v_and_b32 {vFo}, 31, {vFo}", f"v_lshlrev_b32 {vFo}, 7, {vFo}", f"s_lshl_b32 {sTheir}, {sJ}, 10", f"s_add_u32 {sTheir}, {sTheir}, {sWV_}",
          f"s_lshl2_add_u32 {sTheir}, {sTheir}, 4",
          "s_waitcnt vmcnt(0)", f"buffer_store_dword {V(31)}, {d}, {sFL}, {t0} offen {Opt.st_flags}"]
    p += [f"s_lshl2_add_u32 {t0}, {sTl}, {sWV_}", f"s_lshl_b32 {t0}, {t0}, 5", f"v_bfe_u32 {va[0]}, {vL16}, 4, 4", f"v_add_u32 {va[0]}, {t0}, {va[0]}",
          f"v_mul_u32_u24 {va[0]}, 1152, {va[0]}", f"v_lshrrev_b32 {va[1]}, 8, {vL16}", f"v_lshl_add_u32 {va[0]}, {va[1]}, 3, {va[0]}", f"v_add_u32 {va[1]}, {16 * 1152}, {va[0]}",
          f"s_and_b32 {t0}, {sH}, 3", f"s_mul_i32 {t0}, {t0}, 288", f"s_add_u32 {sob8}, {t0}, 256", f"s_lshl_b32 {t1}, {sSg}, 6", f"s_add_u32 {sob}, {t0}, {t1}",
          f"s_lshr_b32 {t0}, {sMy}, 7", f"s_mul_i32 {t0}, {t0}, 12", f"s_add_u32 {t0}, {t0}, {sWV_}", f"s_mul_i32 {sXo}, {t0}, 3072",
          f"s_cmp_eq_u32 {sWV_}, {sSg}", f"s_cselect_b32 {sob8}, {sob8}, {OOB}", f"s_cselect_b32 {soa}, {sXo}, {OOB}"]
    p += [pollx, "s_waitcnt vmcnt(0)"] + check("X", vPl, 1, "exec", pollx) + stamp("x_ready")
    for f in range(3):
        for s_ in range(3):
            p += [f"s_add_u32 {t0}, {sXo if f < 2 else soa}, {4 * 3072 * s_}",
                  tagged(f"buffer_load_dwordx4 {rx(s_, f)}, {vL16}, {sXB}, {t0} offen offset:{1024 * f} {Opt.ld_flags}", f"x{f}")]
    for f, u in enumerate((0, 1, 8)):
        p.append(f"WAITVM x{f}")
        for s_ in range(3):
            for e in range(4):
                lo, hi = acc(u, e >> 1)[2 * (e & 1)], acc(u, e >> 1)[2 * (e & 1) + 1]; z = V(68, 2); src = rx(s_, f)[e]
                p += [f"v_lshlrev_b32 {z[0]}, 16, {src}", f"v_and_b32 {z[1]}, 0xffff0000, {src}", f"v_pk_add_f32 {V(lo.i, 2)}, {V(lo.i, 2)}, {z}"]
        for r in range(2):
            c_ = acc(u, r)
            p += [f"v_cvt_pk_bf16_f32 {c_[0]}, {c_[0]}, {c_[1]}", f"v_cvt_pk_bf16_f32 {c_[1]}, {c_[2]}, {c_[3]}",
                  f"buffer_store_dwordx2 {c_[0:2]}, {va[r]}, {sOut}, {sob if f < 2 else sob8} offen" + (" offset:32" if f == 1 else "")]
    y = V(8)
    p = body + plain(p, body)
    out, _ = fix_waits(plain(p))
    A(texts(out))
    if Opt.stamps:
        A("s_waitcnt vmcnt(0)"); A(stamp("end"))
        A([f"s_lshl_b32 {sT}, s2, 10", f"s_lshr_b32 {sU}, {sW4k}, 4", f"s_add_u32 {sT}, {sT}, {sU}", f"s_add_u32 {sT}, {sT}, {WS_ST - WS_FL}", f"s_mov_b32 {sFL[2]}, {0x100000}",
           f"v_lshrrev_b32 {y}, 2, {vL16}", f"buffer_store_dword v0, {y}, {sFL}, {sT} offen"])

def kernel1(A, code_lines):
    A(kernel_header(NAME + "_kernel"))
    A(["s_cmp_ge_u32 s2, 256", "s_cbranch_scc1 K1_END", f"s_getpc_b64 {sPC}"])
    if Opt.stamps: A(early("start"))
    pro = k1_prologue(code_lines)
    gm = k1_gemms(pro)
    last = max(n for n, x in enumerate(gm) if x.cls == "M") + 1
    tail = [x for x in gm[last:] if x.mn != "s_nop"]
    if Opt.stamps: tail += early_flush() + stamp("gemm_done")
    else: tail += stamp("gemm_done")
    body = pro + gm[:last]
    body += plain(weave(tail + k1_transition(), att_dmas() + [f"s_add_u32 {sWr}, {sWr}, {SLOT}"]), body)
    both, left = fix_waits(body)
    for l in texts(both):
        if l.endswith(";PF"):
            d, a_ = [x.strip(" ,") for x in l.split()[1:3]]
            l = f"global_load_dword {d}, {a_}, {sPC}"
        A(l)
    k1_attention(A)
    k1_outproj(A)
    A.label("K1_END")
    A("s_endpgm")
    k1_slow_paths(A)

HEADER = open(os.path.join(os.path.dirname(os.path.abspath(__file__)), "..", NAME + ".s.ref")).read().split("; Override launch")[0]

def generate(code_lines=17):
    stamp_n[0] = 0; Opt.stamp_names = []; spins.clear()
    A = Asm()
    A(HEADER)
    A("; @launch grid=(256,1,1) block=(256,1,1) lds=163840")
    A('.amdgcn_target "amdgcn-amd-amdhsa--gfx950"'); A(".text")
    kernel1(A, code_lines)
    A('.section .rodata,"a"'); A(".p2align 6"); A(kernel_desc(NAME + "_kernel"))
    t = A.text()
    return t.replace("s_memrealtime", "s_memtime") if Opt.stamps == "cyc" else t

if __name__ == "__main__":
    Opt.verbose = "-v" in sys.argv
    Opt.stamps = "--stamps" in sys.argv
    out = [a for a in sys.argv[1:] if not a.startswith("-")]
    path = out[0] if out else os.path.join(os.path.dirname(os.path.abspath(__file__)), "..", NAME + ".s")
    open(path, "w").write(generate())
    print("wrote", path)
```

```python
import re, sys
import numpy as np

U32 = np.uint32
LANES = np.arange(64, dtype=np.uint32)
VCC, M0, EXEC = 106, 124, 126
np.seterr(all="ignore")

class EmuError(Exception): pass

def f2u(x): return np.asarray(x, dtype=np.float32).view(np.uint32)
def u2f(x): return np.asarray(x, dtype=np.uint32).view(np.float32)
def bf16_rne(f):
    u = f2u(f).astype(np.uint64)
    r = ((u + 0x7FFF + ((u >> 16) & 1)) >> 16).astype(np.uint32) & 0xFFFF
    nan = np.isnan(np.asarray(f, dtype=np.float32))
    return np.where(nan, 0x7FC0, r).astype(np.uint32)

INLINE_F = {"0.5": 0.5, "-0.5": -0.5, "1.0": 1.0, "-1.0": -1.0, "2.0": 2.0, "-2.0": -2.0, "4.0": 4.0, "-4.0": -4.0}

class Op:
    __slots__ = ("k", "i", "n", "val", "neg", "abs")
    def __init__(self, k, i=0, n=1, val=0): self.k, self.i, self.n, self.val, self.neg, self.abs = k, i, n, val, False, False
    def regs(self):
        if self.k == 'v': return [('v', self.i + j) for j in range(self.n)]
        if self.k == 's': return [('s', self.i + j) for j in range(self.n)]
        return []

def parse_op(t, accum=256):
    t = t.strip()
    neg = ab = False
    if t in INLINE_F: return Op('c', val=int(f2u(INLINE_F[t])))
    if t.startswith("-") and not re.match(r"-\d|-0x", t): neg = True; t = t[1:]
    m = re.match(r"abs\((.*)\)$", t) or re.match(r"\|(.*)\|$", t)
    if m: ab = True; t = m.group(1)
    m = re.match(r"([vas])(\d+)$", t)
    if m: k, i, n = m.group(1), int(m.group(2)), 1
    else:
        m = re.match(r"([vas])\[(\d+):(\d+)\]$", t)
        if m: k, i, n = m.group(1), int(m.group(2)), int(m.group(3)) - int(m.group(2)) + 1
        else:
            named = {"vcc": (VCC, 2), "vcc_lo": (VCC, 1), "vcc_hi": (VCC + 1, 1), "exec": (EXEC, 2), "exec_lo": (EXEC, 1),
                     "exec_hi": (EXEC + 1, 1), "m0": (M0, 1)}
            if t in named: return Op('s', *named[t])
            if t == "off": return Op('off')
            try: return Op('c', val=int(t, 0))
            except ValueError: return Op('label', val=t)
    if k == 'a': k, i = 'v', i + accum
    else:
        if k == 'v': assert i + n <= accum, t
    o = Op(k, i, n); o.neg, o.abs = neg, ab
    return o

class Inst:
    __slots__ = ("mn", "ops", "mods", "line", "text", "cls", "rd", "wr", "fn", "target", "ws", "srcc", "ab")

def split_ops(s):
    out, d, cur = [], 0, ""
    for ch in s:
        if ch in "[(": d += 1
        if ch in "])": d -= 1
        if ch == "," and d == 0: out.append(cur); cur = ""
        else: cur += ch
    if cur.strip(): out.append(cur)
    return out

TRANS = ("v_exp_f32", "v_log_f32", "v_rcp_f32", "v_rsq_f32", "v_sqrt_f32")

class Mem:
    def __init__(self): self.bufs = []; self.next = 0x7000_0000_0000
    def add(self, arr, name):
        a = np.ascontiguousarray(arr).view(np.uint8).reshape(-1)
        base = self.next; self.next += (len(a) + (1 << 22)) // (1 << 21) * (1 << 21)
        self.bufs.append((base, a, name)); return base
    def find(self, addr):
        for b, a, n in self.bufs:
            if b <= addr < b + len(a) + 1: return b, a, n
        raise EmuError(f"address {addr:#x} not in any buffer")

class WG:
    def __init__(self, lds_bytes, nw):
        self.lds = np.zeros(163840 // 4, np.uint32); self.lds[:] = 0x7FC1DEAD
        self.size = lds_bytes
        n = 163840 // 4
        self.w_wave = np.full(n, -1, np.int8)
        self.w_epoch = np.full(n, -1, np.int32)
        self.r_epoch = np.full((nw, n), -1, np.int32)
        self.epoch = 0; self.waves = []; self.arrived = 0

PEND = 1 << 30

class Wave:
    def __init__(self, emu, wg, wid, wgid, pc):
        self.e, self.wg, self.wid, self.pc = emu, wg, wid, pc
        self.s = np.zeros(128, np.uint64); self.sw = np.zeros(128, bool)
        self.v = np.full((512, 64), 0x7FC0BEEF, np.uint32); self.vw = np.zeros(512, bool)
        self.scc = 0; self.done = False; self.at_bar = False
        self.s[0] = emu.kernarg & 0xFFFFFFFF; self.s[1] = emu.kernarg >> 32; self.s[2] = wgid
        self.sw[[0, 1, 2, EXEC, EXEC + 1]] = True
        self.s[EXEC] = self.s[EXEC + 1] = 0xFFFFFFFF
        self.v[0] = LANES + 64 * wid; self.vw[0] = True
        self.em = np.ones(64, bool); self.full = True
        self.vmq = []; self.lgq = []; self.pend = {}
        self.hist = []; self.slot = 0
        self.t = 0; self.mfma_free = 0; self.vec_ok = 0; self.marks = []; self.ninst = 0; self.last_trans = False
    def upd_exec(self):
        x = int(self.s[EXEC]) | (int(self.s[EXEC + 1]) << 32)
        self.em = ((x >> np.arange(64, dtype=np.uint64).astype(object)) & 1).astype(bool); self.full = x == (1 << 64) - 1
    def rs(self, o):
        if o.k == 'c': return o.val & 0xFFFFFFFF
        return int(self.s[o.i])
    def rs64(self, o):
        if o.k == 'c': return o.val & 0xFFFFFFFFFFFFFFFF
        return int(self.s[o.i]) | (int(self.s[o.i + 1]) << 32)
    def wsr(self, o, x):
        self.s[o.i] = x & 0xFFFFFFFF
        if o.i in (EXEC, EXEC + 1): self.upd_exec()
    def ws64(self, o, x):
        self.s[o.i] = x & 0xFFFFFFFF; self.s[o.i + 1] = (x >> 32) & 0xFFFFFFFF
        if o.i == EXEC: self.upd_exec()
    def rv(self, o, j=0):
        if o.k == 'v': return self.v[o.i + j]
        if o.k == 's': return np.full(64, int(self.s[o.i + j]), np.uint32)
        return np.full(64, o.val & 0xFFFFFFFF, np.uint32)
    def rf(self, o, j=0):
        x = self.rv(o, j)
        if o.k == 'c' and -16 <= o.val <= 64 and o.val != 0: raise EmuError("int inline const used as float")
        if o.abs: x = x & U32(0x7FFFFFFF)
        if o.neg: x = x ^ U32(0x80000000)
        return x.view(np.float32)
    def wv(self, o, x, j=0):
        x = np.asarray(x)
        if x.dtype == np.float32: x = x.view(np.uint32)
        if self.full: self.v[o.i + j] = x
        else: self.v[o.i + j] = np.where(self.em, x, self.v[o.i + j])
    def mask(self, o):
        x = self.rs64(o)
        return np.array([(x >> i) & 1 for i in range(64)], bool)
    def wmask(self, o, m):
        m = m & self.em
        self.ws64(o, int(np.packbits(m[::-1]).view(">u8")[0]))

def sx(x): x = int(x) & 0xFFFFFFFF; return x - (1 << 32) if x >> 31 else x

B128_GROUPS = [list(range(0, 4)) + list(range(12, 16)) + list(range(20, 28)), list(range(4, 12)) + list(range(16, 20)) + list(range(28, 32))]
B128_GROUPS += [[x + 32 for x in g] for g in B128_GROUPS]

class Emu:
    def __init__(self, text, accum=256):
        self.accum = accum
        self.code = []; self.labels = {}; self.mem = Mem(); self.warn = {}; self.conf = {}
        self.strict_uninit = True
        self.on_store = None
        in_text = True
        for ln, raw in enumerate(text.split("\n"), 1):
            l = raw.split(";")[0].strip()
            mk = re.search(r";\s*@mark\s+(\S+)", raw)
            if mk and not l:
                i = Inst(); i.mn = "@mark"; i.text = mk.group(1); i.line = ln; i.cls = "X"; i.rd = i.wr = []; i.ws = 0; i.fn = None
                self.code.append(i); continue
            if not l: continue
            if l.startswith(".section"): in_text = False
            if l.startswith(".text"): in_text = True
            if l.startswith(".") and not l.endswith(":"): continue
            if not in_text: continue
            if l.endswith(":"): self.labels[l[:-1]] = len(self.code); continue
            self.code.append(self.decode(l, ln))
        for i in self.code:
            if i.mn.startswith("s_cbranch") or i.mn == "s_branch": i.target = self.labels[i.ops[0].val]
    def w(self, inst, msg):
        k = (inst.line, msg)
        if k not in self.warn:
            self.warn[k] = 0; print(f"[emu] line {inst.line}: {inst.text}: {msg}")
        self.warn[k] += 1

    def decode(self, l, ln):
        p = l.split(None, 1); mn = re.sub(r"_e(32|64)$", "", p[0]); rest = p[1] if len(p) > 1 else ""
        i = Inst(); i.mn, i.line, i.text = mn, ln, l; i.mods = {}; i.ws = 1; i.srcc = []; i.ab = []
        if mn == "s_waitcnt":
            i.ops = []; i.mods = {k: int(x) for k, x in re.findall(r"(\w+)\((\d+)\)", rest)}
        elif mn in ("buffer_inv", "buffer_wbl2"):
            i.ops = []
        else:
            parts = split_ops(rest)
            if parts:
                last = parts[-1].strip().split()
                parts[-1] = last[0]
                for m in last[1:]:
                    if ":" in m: k, x = m.split(":", 1); i.mods[k] = x
                    else: i.mods[m] = True
            i.ops = [parse_op(x, self.accum) for x in parts] if mn != "s_getreg_b32" else [parse_op(parts[0])]
        o = i.ops
        R = lambda *xs: [r for x in xs for r in x.regs()]
        if mn.startswith("v_mfma"):
            i.cls = "M"; i.wr = R(o[0]); i.rd = R(o[1], o[2], o[3]); i.srcc = R(o[3]); i.ab = R(o[1], o[2])
        elif mn.startswith("v_"):
            i.cls = "T" if mn in TRANS else "V"
            if mn.startswith("v_permlane") and "swap" in mn: i.wr = R(o[0], o[1]); i.rd = R(o[0], o[1])
            elif mn in ("v_fmac_f32", "v_dot2c_f32_bf16"): i.wr = R(o[0]); i.rd = R(*o)
            elif mn in ("v_add_co_u32",): i.wr = R(o[0], o[1]); i.rd = R(*o[2:])
            elif mn in ("v_addc_co_u32",): i.wr = R(o[0], o[1]); i.rd = R(*o[2:])
            elif mn == "v_nop": i.wr = i.rd = []
            else: i.wr = R(o[0]); i.rd = R(*o[1:])
        elif mn.startswith("ds_"):
            i.cls = "D"
            if mn.startswith("ds_read") or mn.startswith("ds_bperm"): i.wr = R(o[0]); i.rd = R(*o[1:])
            else: i.wr = []; i.rd = R(*o)
        elif mn.startswith("buffer_") or mn.startswith("global_"):
            i.cls = "G"
            if mn in ("buffer_inv", "buffer_wbl2"): i.wr = i.rd = []
            elif mn.startswith("buffer_load") and "lds" in i.mods: i.wr = []; i.rd = R(*o) + [('s', M0)]
            elif mn.startswith("buffer_load") or mn.startswith("global_load"): i.wr = R(o[0]); i.rd = R(*o[1:])
            elif mn.startswith("buffer_atomic") and "sc0" in i.mods: i.wr = R(o[0]); i.rd = R(*o)
            else: i.wr = []; i.rd = R(*o)
        else:
            i.cls = "S"
            if mn.startswith("s_cmp") or mn.startswith("s_bitcmp"): i.wr = []; i.rd = R(*o)
            elif mn.startswith("s_cbranch_vcc"): i.wr = []; i.rd = [('s', VCC), ('s', VCC + 1)]
            elif mn in ("s_waitcnt", "s_barrier", "s_nop", "s_endpgm", "s_sleep", "s_setprio", "s_branch") or mn.startswith("s_cbranch"):
                i.wr = i.rd = []
            elif mn in ("s_addk_i32", "s_mulk_i32"): i.wr = R(o[0]); i.rd = R(o[0])
            else: i.wr = R(o[0]); i.rd = R(*o[1:])
            if mn == "s_nop": i.ws = o[0].val + 1
        i.fn = getattr(self, "x_" + mn, None)
        if i.fn is None:
            if mn in SOP2: i.fn = self.sop2
            elif mn in SCMP: i.fn = self.scmp
            elif mn in VI: i.fn = self.vint
            elif mn in VF: i.fn = self.vflt
            elif mn.startswith("v_cmp_"): i.fn = self.vcmp
            elif mn.startswith("s_load_dword"): i.fn = self.sload
            elif mn.startswith("ds_read_b") and "tr" not in mn: i.fn = self.dsread
            elif mn.startswith("ds_write_b"): i.fn = self.dswrite
            elif mn.startswith("buffer_load"): i.fn = self.bload
            elif mn.startswith("buffer_store"): i.fn = self.bstore
            else: raise EmuError(f"line {ln}: unsupported instruction {l}")
        return i

    def hazards(self, w, i):
        rd, wr = set(i.rd), set(i.wr)
        isvalu = i.cls in "VT"
        for (slot, p) in w.hist:
            d = w.slot - slot - p.ws
            need = 0; pw = set(p.wr)
            if p.cls == "M":
                four = "16x16" in p.mn
                if i.cls == "M":
                    if pw & set(i.ab): need = 8 if four else 12
                    elif pw & set(i.srcc) and (p.wr != i.srcc or p.mn != i.mn): need = 6 if four else 10
                    elif pw & wr and not (pw & set(i.srcc)): need = 0
                elif (pw & rd) or (pw & wr): need = 8 if four else 12
                if isvalu and set(p.srcc) & wr: need = max(need, 3 if four else 7)
            elif p.cls in "VT":
                pv = {r for r in pw if r[0] == 'v'}; ps = {r for r in pw if r[0] == 's'}
                if i.cls == "M" and pv & rd: need = 2
                if p.cls == "T" and i.cls == "V" and pv & rd: need = max(need, 1)
                if isvalu and ps & rd: need = max(need, 4 if i.mn in ("v_readlane_b32", "v_writelane_b32") else 2)
                if i.cls == "G" and ps & rd: need = max(need, 5)
                if i.mn in ("v_readfirstlane_b32", "v_readlane_b32") and pv & rd: need = max(need, 1)
                if (i.mn.startswith("v_permlane") or "dpp" in i.mn) and pv & rd: need = max(need, 2)
                if p.mn.startswith("v_dot2") and (isvalu or i.cls == "M") and (pv & (rd | wr)):
                    same = i.mn == p.mn
                    accop = i.ops[0] if i.mn == "v_dot2c_f32_bf16" else (i.ops[3] if same else None)
                    if not (same and not (pv & set(i.ops[1].regs() + i.ops[2].regs())) and pv & set(accop.regs())): need = max(need, 3)
                if ("sdwa" in p.mn or "op_sel" in p.mods) and isvalu and pv & (rd | wr) and not p.mn.startswith("v_pk"): need = max(need, 1)
            elif p.cls == "S":
                if ('s', M0) in pw and i.cls == "G" and "lds" in i.mods: need = 1
            elif p.cls == "G":
                if ("store_dwordx4" in p.mn or "store_dwordx3" in p.mn):
                    data = set(p.ops[0].regs() if p.mn.startswith("buffer") else p.ops[1].regs())
                    if data & wr: need = 2 if isvalu else 1
            if d < need: self.w(i, f"HAZARD: needs {need} wait states after line {p.line} ({p.text}), has {d}")
        w.hist.append((w.slot, i)); w.slot += i.ws
        while w.hist and w.slot - w.hist[0][0] > 24: w.hist.pop(0)

    def timing(self, w, i):
        t = w.t
        if i.cls == "M":
            t = max(t, w.mfma_free, w.vec_ok)
            w.mfma_free = t + (16 if "16x16" in i.mn else 32); w.vec_ok = t + 8; w.t = t + 4
        elif i.cls == "S": w.t = t + 4 * i.ws
        else:
            t = max(t, w.vec_ok)
            if i.cls == "D" and w.last_trans: t += 8
            w.t = t + (8 if i.cls in "TG" else 4)
        w.last_trans = i.cls == "T"

    def launch(self, kernel, wgids, lds, ptrs, nw=4, max_inst=2_000_000):
        ka = np.array(ptrs, dtype=np.uint64); self.kernarg = self.mem.add(ka, "kernarg")
        wgs = []
        for g in wgids:
            wg = WG(lds, nw); wg.id = g
            wg.waves = [Wave(self, wg, k, g, self.labels[kernel]) for k in range(nw)]; wgs.append(wg)
        code = self.code
        while True:
            alive = False; progress = False
            for wg in wgs:
                for w in wg.waves:
                    if w.done: continue
                    alive = True
                    if w.at_bar: continue
                    progress = True
                    while True:
                        i = code[w.pc]; w.pc += 1
                        if i.cls == "X": w.marks.append((i.text, w.t)); continue
                        w.ninst += 1
                        if w.ninst > max_inst: raise EmuError(f"instruction limit at line {i.line}")
                        for r in i.rd:
                            if r in w.pend: self.w(i, f"reads {r} with load pending (line {w.pend[r]})")
                            if not (w.vw if r[0] == 'v' else w.sw)[r[1]] and self.strict_uninit: self.w(i, f"reads unwritten {r}")
                        for r in i.wr:
                            if r in w.pend and not (i.cls == "D" and w.pend[r] < 0): self.w(i, f"writes {r} with load pending (line {w.pend[r]})")
                            (w.vw if r[0] == 'v' else w.sw)[r[1]] = True
                        self.hazards(w, i); self.timing(w, i)
                        try:
                            y = i.fn(w, i)
                        except EmuError as ex:
                            raise EmuError(f"wg {wg.id} wave {w.wid} line {i.line} [{i.text}]: {ex}")
                        if y: break
                live = [w for w in wg.waves if not w.done]
                if live and all(w.at_bar for w in live):
                    wg.epoch += 1; tm = max(w.t for w in live)
                    for w in live: w.at_bar = False; w.t = tm
                    progress = True
            if not alive: break
            if not progress: raise EmuError("deadlock")
        return wgs

    def sop2(self, w, i):
        o = i.ops; f, b64, setscc = SOP2[i.mn]
        if b64:
            r = f(w.rs64(o[1]), (w.rs64(o[2]) if o[2].n == 2 or o[2].k == 'c' else w.rs(o[2])) if len(o) > 2 else 0, w.scc)
            if isinstance(r, tuple): r, w.scc = r
            elif setscc: w.scc = int((r & 0xFFFFFFFFFFFFFFFF) != 0)
            w.ws64(o[0], r)
        else:
            r = f(w.rs(o[1]), w.rs(o[2]) if len(o) > 2 else 0, w.scc)
            if isinstance(r, tuple): r, w.scc = r
            elif setscc: w.scc = int((r & 0xFFFFFFFF) != 0)
            w.wsr(o[0], r)
    def scmp(self, w, i):
        if i.mn.endswith("64"): w.scc = int(SCMP[i.mn](w.rs64(i.ops[0]), w.rs64(i.ops[1])))
        else: w.scc = int(SCMP[i.mn](w.rs(i.ops[0]), w.rs(i.ops[1])))
    def x_s_addk_i32(self, w, i): w.wsr(i.ops[0], w.rs(i.ops[0]) + i.ops[1].val); w.scc = 0
    def x_s_and_saveexec_b64(self, w, i):
        e = int(w.s[EXEC]) | (int(w.s[EXEC + 1]) << 32); m = w.rs64(i.ops[1])
        w.ws64(i.ops[0], e); w.ws64(Op('s', EXEC, 2), e & m); w.scc = int((e & m) != 0)
    def sload(self, w, i):
        o = i.ops; a = w.rs64(o[1]) + w.rs(o[2]); b, arr, _ = self.mem.find(a)
        d = arr[a - b:a - b + 4 * o[0].n].view(np.uint32)
        for j in range(o[0].n): w.s[o[0].i + j] = d[j]; w.pend[('s', o[0].i + j)] = i.line
        w.lgq.append(("smem", i.wr, None))
    def x_s_memtime(self, w, i): w.ws64(i.ops[0], w.t); w.lgq.append(("smem", [], None))
    x_s_memrealtime = x_s_memtime
    def x_s_getreg_b32(self, w, i): w.wsr(i.ops[0], w.wg.id & 7)
    def x_s_nop(self, w, i): pass
    x_s_setprio = x_v_nop = x_s_nop
    def x_buffer_inv(self, w, i): w.vmq.append(("inv", [], None))
    x_buffer_wbl2 = x_buffer_inv
    def x_s_sleep(self, w, i): return True
    def x_s_endpgm(self, w, i): w.done = True; return True
    def x_s_barrier(self, w, i): w.at_bar = True; return True
    def x_s_branch(self, w, i): w.pc = i.target; w.t += 16
    def br(self, w, i, c):
        if c: w.pc = i.target; w.t += 16
    def x_s_cbranch_scc0(self, w, i): self.br(w, i, not w.scc)
    def x_s_cbranch_scc1(self, w, i): self.br(w, i, w.scc)
    def x_s_cbranch_vccz(self, w, i): self.br(w, i, w.rs64(Op('s', VCC, 2)) == 0)
    def x_s_cbranch_vccnz(self, w, i): self.br(w, i, w.rs64(Op('s', VCC, 2)) != 0)
    def x_s_cbranch_execz(self, w, i): self.br(w, i, not w.em.any())
    def x_s_cbranch_execnz(self, w, i): self.br(w, i, w.em.any())
    def retire(self, w, e):
        kind, regs, idx = e
        still = {r for q in (w.lgq, w.vmq) for x in q for r in x[1]}
        for r in regs:
            if r not in still: w.pend.pop(r, None)
        wg = w.wg
        if kind in ("dma", "dsw"):
            m = (wg.w_wave[idx] == w.wid) & (wg.w_epoch[idx] == PEND)
            wg.w_epoch[idx[m]] = wg.epoch
        elif kind == "dsr":
            wg.r_epoch[w.wid, idx] = wg.epoch
    def x_s_waitcnt(self, w, i):
        if "vmcnt" in i.mods:
            assert i.mods["vmcnt"] <= 63
            while len(w.vmq) > i.mods["vmcnt"]: self.retire(w, w.vmq.pop(0))
        if "lgkmcnt" in i.mods:
            n = i.mods["lgkmcnt"]; assert n <= 15
            if n and any(e[0] == "smem" for e in w.lgq): self.w(i, "counted lgkmcnt with SMEM outstanding")
            while len(w.lgq) > n: self.retire(w, w.lgq.pop(0))

    def vint(self, w, i):
        o = i.ops; w.wv(o[0], VI[i.mn](*[w.rv(x) for x in o[1:]]).astype(np.uint32))
    def vflt(self, w, i):
        o = i.ops; w.wv(o[0], VF[i.mn](*[w.rf(x) for x in o[1:]]).astype(np.float32))
    def x_v_fmac_f32(self, w, i):
        o = i.ops; w.wv(o[0], (w.rf(o[1]).astype(np.float64) * w.rf(o[2]) + w.rf(o[0])).astype(np.float32))
    def vcmp(self, w, i):
        _, _, c, t = i.mn.split("_"); o = i.ops
        if t == "f32": a, b = w.rf(o[1]), w.rf(o[2])
        elif t == "i32": a, b = w.rv(o[1]).view(np.int32), w.rv(o[2]).view(np.int32)
        else: a, b = w.rv(o[1]), w.rv(o[2])
        f = {"lt": lambda: a < b, "le": lambda: a <= b, "gt": lambda: a > b, "ge": lambda: a >= b, "eq": lambda: a == b, "ne": lambda: a != b,
             "neq": lambda: a != b, "nge": lambda: ~(a >= b), "ngt": lambda: ~(a > b), "nle": lambda: ~(a <= b), "nlt": lambda: ~(a < b)}[c]
        w.wmask(o[0], f())
    def x_v_cndmask_b32(self, w, i):
        o = i.ops
        a = w.rv(o[1]); b = w.rv(o[2])
        if o[1].neg: a = a ^ U32(0x80000000)
        if o[2].neg: b = b ^ U32(0x80000000)
        w.wv(o[0], np.where(w.mask(o[3]), b, a))
    def x_v_readfirstlane_b32(self, w, i): w.wsr(i.ops[0], int(w.rv(i.ops[1])[np.argmax(w.em)]))
    def x_v_readlane_b32(self, w, i): w.wsr(i.ops[0], int(w.rv(i.ops[1])[w.rs(i.ops[2]) & 63]))
    def x_v_writelane_b32(self, w, i): w.v[i.ops[0].i][w.rs(i.ops[2]) & 63] = w.rs(i.ops[1])
    def x_v_cvt_pk_bf16_f32(self, w, i):
        o = i.ops; w.wv(o[0], bf16_rne(w.rf(o[1])) | (bf16_rne(w.rf(o[2])) << U32(16)))
    def x_v_cvt_f32_u32(self, w, i): w.wv(i.ops[0], w.rv(i.ops[1]).astype(np.float32))
    def pk(self, w, i, f):
        o = i.ops
        def hi(k):
            x = o[k]
            sel = i.mods.get("op_sel_hi", "[1,1,1]").strip("[]").split(",")
            return w.rf(x, 1) if (x.n == 2 and sel[k - 1] == "1") else w.rf(x, 0)
        lo_ = f(*[w.rf(x, 0) for x in o[1:]]); hi_ = f(*[hi(k) for k in range(1, len(o))])
        w.wv(o[0], lo_.astype(np.float32), 0); w.wv(o[0], hi_.astype(np.float32), 1)
    def x_v_pk_mul_f32(self, w, i): self.pk(w, i, lambda a, b: a * b)
    def x_v_pk_add_f32(self, w, i): self.pk(w, i, lambda a, b: a + b)
    def x_v_pk_fma_f32(self, w, i): self.pk(w, i, lambda a, b, c: a.astype(np.float64) * b + c)
    @staticmethod
    def dot2(a, b, c):
        lo = lambda x: (x << U32(16)).view(np.float32).astype(np.float64)
        hi = lambda x: (x & U32(0xFFFF0000)).view(np.float32).astype(np.float64)
        return (lo(a) * lo(b) + hi(a) * hi(b) + c).astype(np.float32)
    def x_v_dot2_f32_bf16(self, w, i): o = i.ops; w.wv(o[0], self.dot2(w.rv(o[1]), w.rv(o[2]), w.rf(o[3])))
    def x_v_dot2c_f32_bf16(self, w, i): o = i.ops; w.wv(o[0], self.dot2(w.rv(o[1]), w.rv(o[2]), w.rf(o[0])))
    def x_v_permlane32_swap_b32(self, w, i):
        d, s_ = w.v[i.ops[0].i], w.v[i.ops[1].i]
        t = s_[:32].copy(); s_[:32] = d[32:]; d[32:] = t
    def x_v_permlane16_swap_b32(self, w, i):
        d, s_ = w.v[i.ops[0].i], w.v[i.ops[1].i]
        for b in (0, 32):
            t = s_[b:b + 16].copy(); s_[b:b + 16] = d[b + 16:b + 32]; d[b + 16:b + 32] = t
    def x_v_mbcnt_lo_u32_b32(self, w, i):
        assert i.ops[1].val == -1; w.wv(i.ops[0], np.minimum(LANES, 32) + w.rv(i.ops[2]))
    def x_v_mbcnt_hi_u32_b32(self, w, i):
        assert i.ops[1].val == -1; w.wv(i.ops[0], np.maximum(LANES, 32) - U32(32) + w.rv(i.ops[2]))
    def unpack(self, w, o):
        x = w.v[o.i:o.i + 4]
        r = np.empty((64, 8), np.uint32); r[:, 0::2] = (x << U32(16)).T; r[:, 1::2] = (x & U32(0xFFFF0000)).T
        return r.view(np.float32)
    def x_v_mfma_f32_16x16x32_bf16(self, w, i):
        o = i.ops
        if not w.full: self.w(i, "MFMA with partial exec")
        a = self.unpack(w, o[1]).reshape(4, 16, 8).transpose(1, 0, 2).reshape(16, 32)
        b = self.unpack(w, o[2]).reshape(4, 16, 8).transpose(1, 0, 2).reshape(16, 32)
        d = a @ b.T
        d = d.reshape(4, 4, 16).transpose(1, 0, 2).reshape(4, 64)
        if o[3].k == 'v': d = d + w.v[o[3].i:o[3].i + 4].view(np.float32)
        else: assert o[3].val == 0
        w.v[o[0].i:o[0].i + 4] = d.view(np.uint32)

    def ldsidx(self, w, i, addr, nd, align):
        a = addr.astype(np.int64) + int(i.mods.get("offset", "0"), 0)
        act = a[w.em]
        if (act % align).any(): raise EmuError(f"misaligned LDS address {act[act % align != 0][0]}")
        if (act + 4 * nd > w.wg.size).any(): raise EmuError(f"LDS address out of range {act.max()}")
        return np.where(w.em, a, 0)[:, None] // 4 + np.arange(nd)[None, :]
    def chk_read(self, w, i, idx):
        wg = w.wg; ww = wg.w_wave[idx]; we = wg.w_epoch[idx]
        if (ww < 0).any(): self.w(i, "reads never-written LDS")
        other = (ww != w.wid) & (ww >= 0)
        if (other & (we >= wg.epoch)).any(): self.w(i, "LDS RAW race (other wave's write not waited+barriered)")
        own = (ww == w.wid) & (we == PEND)
        if own.any():
            pend_dma = [e[2] for e in w.vmq if e[0] == "dma"]
            if pend_dma and np.isin(idx[own], np.concatenate(pend_dma)).any(): self.w(i, "LDS read of own pending DMA")
        wg.r_epoch[w.wid, idx] = PEND
    def chk_write(self, w, i, idx, dma):
        wg = w.wg
        for k in range(len(wg.waves)):
            re_ = wg.r_epoch[k, idx]
            if k != w.wid and (re_ >= wg.epoch).any(): self.w(i, f"LDS WAR race vs wave {k}")
            if k == w.wid and dma and (re_ == PEND).any(): self.w(i, "DMA over own un-waited ds_read")
        other = (wg.w_wave[idx] != w.wid) & (wg.w_wave[idx] >= 0)
        if (other & (wg.w_epoch[idx] >= wg.epoch)).any(): self.w(i, "LDS WAW race")
        wg.w_wave[idx] = w.wid; wg.w_epoch[idx] = PEND
    def banks(self, w, i, idx, groups, nb):
        extra = 0
        for g in groups:
            g = [x for x in g if w.em[x]]
            if not g: continue
            u = np.unique(idx[g].reshape(-1)); extra += np.bincount(u % nb).max() - 1
        if extra:
            k = (i.line, i.text); self.conf[k] = max(self.conf.get(k, 0), extra)
    def dsread(self, w, i):
        o = i.ops; nd = o[0].n
        idx = self.ldsidx(w, i, w.rv(o[1]), nd, 4 * nd if nd != 3 else 16)
        act = idx[w.em].reshape(-1); self.chk_read(w, i, act)
        if nd == 4: self.banks(w, i, idx, B128_GROUPS, 64)
        elif nd == 2: self.banks(w, i, idx, [range(32), range(32, 64)], 64)
        elif nd == 1: self.banks(w, i, idx, [range(32), range(32, 64)], 32)
        for j in range(nd): w.wv(o[0], w.wg.lds[idx[:, j]], j)
        for r in i.wr: w.pend[r] = -i.line
        w.lgq.append(("dsr", i.wr, act))
    def x_ds_read_b64_tr_b16(self, w, i):
        o = i.ops
        if not w.full: self.w(i, "tr read with partial exec")
        idx = self.ldsidx(w, i, w.rv(o[1]), 2, 8); self.chk_read(w, i, idx.reshape(-1))
        self.banks(w, i, idx, [range(32), range(32, 64)], 64)
        d = np.ascontiguousarray(w.wg.lds[idx]).view(np.uint16).reshape(4, 4, 16)
        t = np.ascontiguousarray(d.transpose(0, 2, 1)).reshape(64, 4).view(np.uint32)
        w.wv(o[0], t[:, 0], 0); w.wv(o[0], t[:, 1], 1)
        for r in i.wr: w.pend[r] = -i.line
        w.lgq.append(("dsr", i.wr, idx.reshape(-1)))
    def dswrite(self, w, i):
        o = i.ops
        if i.mn == "ds_write_b16" or i.mn == "ds_write_b16_d16_hi":
            a = w.rv(o[0]).astype(np.int64) + int(i.mods.get("offset", "0"), 0)
            x = w.rv(o[1]); x = (x >> U32(16)) if "hi" in i.mn else x
            act = (a[w.em] // 4); self.chk_write(w, i, act, False)
            w.wg.lds.view(np.uint16)[a[w.em] // 2] = x[w.em].astype(np.uint16)
            w.lgq.append(("dsw", [], act)); return
        nd = o[1].n
        idx = self.ldsidx(w, i, w.rv(o[0]), nd, 4 * nd if nd != 3 else 16)
        act = idx[w.em].reshape(-1); self.chk_write(w, i, act, False)
        gs = {1: 32, 2: 16, 3: 8, 4: 8}[nd]
        self.banks(w, i, idx, [range(k, k + gs) for k in range(0, 64, gs)], 32)
        for j in range(nd): w.wg.lds[idx[w.em, j]] = w.rv(o[1], j)[w.em]
        w.lgq.append(("dsw", [], act))
    def x_ds_or_b32(self, w, i):
        o = i.ops; idx = self.ldsidx(w, i, w.rv(o[0]), 1, 4)[w.em, 0]
        np.bitwise_or.at(w.wg.lds, idx, w.rv(o[1])[w.em])
        wg = w.wg; wg.w_wave[idx] = w.wid; wg.w_epoch[idx] = PEND
        w.lgq.append(("dsw", [], idx))
    def x_ds_bpermute_b32(self, w, i):
        o = i.ops; w.wv(o[0], w.rv(o[2])[(w.rv(o[1]) >> U32(2)) & U32(63)])
        for r in i.wr: w.pend[r] = -i.line
        w.lgq.append(("x", i.wr, None))

    def baddr(self, w, i, vo, srd, so, nbytes):
        base = int(w.s[srd.i]) | ((int(w.s[srd.i + 1]) & 0xFFFF) << 32); nrec = int(w.s[srd.i + 2])
        assert int(w.s[srd.i + 3]) == 0x20000 and int(w.s[srd.i + 1]) >> 16 == 0
        off = np.zeros(64, np.int64)
        if "offen" in i.mods: off = w.rv(vo).astype(np.int64)
        io = int(i.mods.get("offset", "0"), 0); assert io < 4096
        off = off + io + w.rs(so)
        b, arr, name = self.mem.find(base); self.cur_buf = name
        if base - b + nrec > len(arr): raise EmuError(f"SRD range exceeds buffer {name}")
        al = min(nbytes, 4)
        if (off[w.em] % al).any(): raise EmuError("misaligned global access")
        return arr, base - b, off, nrec, io
    def bload(self, w, i):
        o = i.ops; lds = "lds" in i.mods
        if not w.em.any(): self.w(i, "VMEM with exec=0")
        if i.mn in ("buffer_load_ushort", "buffer_load_short_d16"):
            arr, b0, off, nrec, io = self.baddr(w, i, o[1], o[2], o[3], 2)
            ok = (off + 2 <= nrec); a = np.where(ok, b0 + off, 0)
            x = np.where(ok, arr[a].astype(np.uint32) | (arr[a + 1].astype(np.uint32) << U32(8)), 0)
            w.wv(o[0], x.astype(np.uint32))
        else:
            nd = {"": 1, "x2": 2, "x3": 3, "x4": 4}[i.mn[len("buffer_load_dword"):]]
            vo, srd, so = (o[0], o[1], o[2]) if lds else (o[1], o[2], o[3])
            arr, b0, off, nrec, io = self.baddr(w, i, vo, srd, so, 4 * nd)
            a32 = arr[:len(arr) // 4 * 4].view(np.uint32)
            aa = off[:, None] + 4 * np.arange(nd)[None, :]
            ok = aa + 4 <= nrec
            x = np.where(ok, a32[np.where(ok, (b0 + aa) // 4, 0)], 0).astype(np.uint32)
            if lds:
                la = (int(w.s[M0]) & 0x3FFFC) + io + np.arange(64)[:, None] * 4 * nd + 4 * np.arange(nd)[None, :]
                if (la[w.em] + 4 > w.wg.size).any(): raise EmuError("LDS DMA out of range")
                idx = (la[w.em] // 4).reshape(-1); self.chk_write(w, i, idx, True)
                w.wg.lds[idx] = x[w.em].reshape(-1)
                w.vmq.append(("dma", [], idx));
                if len(w.vmq) > 63: self.w(i, "vmcnt overflow")
                return
            for j in range(nd): w.wv(o[0], x[:, j], j)
        for r in i.wr: w.pend[r] = i.line
        w.vmq.append(("ld", i.wr, None))
        if len(w.vmq) > 63: self.w(i, "vmcnt overflow")
    def bstore(self, w, i):
        o = i.ops
        if not w.em.any(): self.w(i, "VMEM with exec=0")
        if i.mn == "buffer_store_short":
            arr, b0, off, nrec, io = self.baddr(w, i, o[1], o[2], o[3], 2)
            ok = (off + 2 <= nrec) & w.em
            arr[:len(arr) // 2 * 2].view(np.uint16)[(b0 + off[ok]) // 2] = w.rv(o[0])[ok].astype(np.uint16)
        else:
            nd = o[0].n
            arr, b0, off, nrec, io = self.baddr(w, i, o[1], o[2], o[3], 4 * nd)
            a32 = arr[:len(arr) // 4 * 4].view(np.uint32)
            for j in range(nd):
                ok = (off + 4 * j + 4 <= nrec) & w.em
                a32[(b0 + off[ok]) // 4 + j] = w.rv(o[0], j)[ok]
        ok = (off + 4 <= nrec) & w.em; rng = None
        if ok.any():
            rng = (self.cur_buf, int(b0 + off[ok].min()), int(b0 + off[ok].max()), i.line)
            if self.on_store: self.on_store(w, i, self.cur_buf, b0 + off[ok], w.rv(o[0])[ok])
        w.vmq.append(("st", [], rng))
        if len(w.vmq) > 63: self.w(i, "vmcnt overflow")
    def atomic(self, w, i, f):
        o = i.ops; arr, b0, off, nrec, io = self.baddr(w, i, o[1], o[2], o[3], 4)
        a32 = arr[:len(arr) // 4 * 4].view(np.uint32); old = np.zeros(64, np.uint32); x = w.rv(o[0])
        for l in np.nonzero(w.em & (off + 4 <= nrec))[0]:
            k = (b0 + off[l]) // 4; old[l] = a32[k]; a32[k] = f(int(a32[k]), int(x[l])) & 0xFFFFFFFF
        ok = w.em & (off + 4 <= nrec)
        if ok.any() and self.on_store: self.on_store(w, i, self.cur_buf, b0 + off[ok], x[ok])
        if "sc0" in i.mods:
            w.wv(o[0], old)
            for r in i.wr: w.pend[r] = i.line
        w.vmq.append(("at", i.wr, None))
    def x_buffer_atomic_add(self, w, i): self.atomic(w, i, lambda a, b: a + b)
    def x_buffer_atomic_or(self, w, i): self.atomic(w, i, lambda a, b: a | b)

M32 = 0xFFFFFFFF
SOP2 = {
    "s_mov_b32": (lambda a, b, c: a, 0, 0), "s_movk_i32": (lambda a, b, c: a, 0, 0), "s_mov_b64": (lambda a, b, c: a, 1, 0),
    "s_add_u32": (lambda a, b, c: (a + b, int(a + b > M32)), 0, 0), "s_addc_u32": (lambda a, b, c: (a + b + c, int(a + b + c > M32)), 0, 0),
    "s_sub_u32": (lambda a, b, c: (a - b, int(b > a)), 0, 0), "s_add_i32": (lambda a, b, c: (a + b, 0), 0, 0), "s_sub_i32": (lambda a, b, c: (a - b, 0), 0, 0),
    "s_mul_i32": (lambda a, b, c: a * b, 0, 0), "s_mul_hi_u32": (lambda a, b, c: (a * b) >> 32, 0, 0),
    "s_lshl_b32": (lambda a, b, c: a << (b & 31), 0, 1), "s_lshr_b32": (lambda a, b, c: a >> (b & 31), 0, 1),
    "s_ashr_i32": (lambda a, b, c: sx(a) >> (b & 31), 0, 1),
    "s_lshl_b64": (lambda a, b, c: a << (b & 63), 1, 1), "s_lshr_b64": (lambda a, b, c: a >> (b & 63), 1, 1),
    "s_and_b32": (lambda a, b, c: a & b, 0, 1), "s_or_b32": (lambda a, b, c: a | b, 0, 1), "s_xor_b32": (lambda a, b, c: a ^ b, 0, 1),
    "s_andn2_b32": (lambda a, b, c: a & ~b, 0, 1), "s_not_b32": (lambda a, b, c: ~a, 0, 1),
    "s_and_b64": (lambda a, b, c: a & b, 1, 1), "s_or_b64": (lambda a, b, c: a | b, 1, 1), "s_xor_b64": (lambda a, b, c: a ^ b, 1, 1),
    "s_andn2_b64": (lambda a, b, c: a & ~b, 1, 1), "s_not_b64": (lambda a, b, c: ~a, 1, 1),
    "s_cselect_b32": (lambda a, b, c: a if c else b, 0, 0), "s_cselect_b64": (lambda a, b, c: a if c else b, 1, 0),
    "s_min_u32": (lambda a, b, c: (min(a, b), int(a < b)), 0, 0), "s_max_u32": (lambda a, b, c: (max(a, b), int(a > b)), 0, 0),
    "s_min_i32": (lambda a, b, c: (min(sx(a), sx(b)), int(sx(a) < sx(b))), 0, 0), "s_max_i32": (lambda a, b, c: (max(sx(a), sx(b)), int(sx(a) > sx(b))), 0, 0),
    "s_lshl1_add_u32": (lambda a, b, c: ((a << 1) + b, 0), 0, 0), "s_lshl2_add_u32": (lambda a, b, c: ((a << 2) + b, 0), 0, 0),
    "s_lshl3_add_u32": (lambda a, b, c: ((a << 3) + b, 0), 0, 0), "s_lshl4_add_u32": (lambda a, b, c: ((a << 4) + b, 0), 0, 0),
    "s_bfe_u32": (lambda a, b, c: (a >> (b & 31)) & ((1 << ((b >> 16) & 127)) - 1), 0, 1),
}
SCMP = {
    "s_cmp_eq_u32": lambda a, b: a == b, "s_cmp_lg_u32": lambda a, b: a != b, "s_cmp_lt_u32": lambda a, b: a < b, "s_cmp_le_u32": lambda a, b: a <= b,
    "s_cmp_gt_u32": lambda a, b: a > b, "s_cmp_ge_u32": lambda a, b: a >= b,
    "s_cmp_eq_i32": lambda a, b: a == b, "s_cmp_lg_i32": lambda a, b: a != b, "s_cmp_lt_i32": lambda a, b: sx(a) < sx(b), "s_cmp_le_i32": lambda a, b: sx(a) <= sx(b),
    "s_cmp_gt_i32": lambda a, b: sx(a) > sx(b), "s_cmp_ge_i32": lambda a, b: sx(a) >= sx(b),
    "s_cmp_eq_u64": lambda a, b: a == b, "s_cmp_lg_u64": lambda a, b: a != b,
    "s_bitcmp1_b32": lambda a, b: (a >> (b & 31)) & 1, "s_bitcmp0_b32": lambda a, b: not ((a >> (b & 31)) & 1),
}
_31 = U32(31)
u24 = lambda x: (x & U32(0xFFFFFF)).astype(np.uint64)
VI = {
    "v_mov_b32": lambda a: a, "v_accvgpr_read_b32": lambda a: a, "v_accvgpr_write_b32": lambda a: a, "v_accvgpr_mov_b32": lambda a: a,
    "v_add_u32": lambda a, b: a + b, "v_sub_u32": lambda a, b: a - b, "v_subrev_u32": lambda a, b: b - a,
    "v_lshlrev_b32": lambda a, b: b << (a & _31), "v_lshrrev_b32": lambda a, b: b >> (a & _31),
    "v_ashrrev_i32": lambda a, b: (b.view(np.int32) >> (a & _31).astype(np.int32)).view(np.uint32),
    "v_and_b32": lambda a, b: a & b, "v_or_b32": lambda a, b: a | b, "v_xor_b32": lambda a, b: a ^ b,
    "v_mul_u32_u24": lambda a, b: u24(a) * u24(b), "v_mul_lo_u32": lambda a, b: a * b,
    "v_mul_hi_u32": lambda a, b: (a.astype(np.uint64) * b) >> np.uint64(32),
    "v_mad_u32_u24": lambda a, b, c: u24(a) * u24(b) + c, "v_add3_u32": lambda a, b, c: a + b + c,
    "v_lshl_add_u32": lambda a, b, c: (a << (b & _31)) + c, "v_add_lshl_u32": lambda a, b, c: (a + b) << (c & _31),
    "v_lshl_or_b32": lambda a, b, c: (a << (b & _31)) | c, "v_and_or_b32": lambda a, b, c: (a & b) | c, "v_or3_b32": lambda a, b, c: a | b | c,
    "v_xad_u32": lambda a, b, c: (a ^ b) + c,
    "v_bfe_u32": lambda a, b, c: (a >> (b & _31)) & ((U32(1) << (c & _31)) - U32(1)),
    "v_min_u32": np.minimum, "v_max_u32": np.maximum,
    "v_max_i32": lambda a, b: np.maximum(a.view(np.int32), b.view(np.int32)).view(np.uint32),
    "v_min_i32": lambda a, b: np.minimum(a.view(np.int32), b.view(np.int32)).view(np.uint32),
    "v_perm_b32": None,
}
def _perm(a, b, c):
    src = np.stack([(b >> U32(8 * k)) & U32(255) for k in range(4)] + [(a >> U32(8 * k)) & U32(255) for k in range(4)])
    r = np.zeros(64, np.uint32)
    for k in range(4):
        sel = (c >> U32(8 * k)) & U32(255)
        byte = np.where(sel < 8, src[np.minimum(sel, 7), np.arange(64)], np.where(sel == 12, 0, 255)).astype(np.uint32)
        r |= byte << U32(8 * k)
    return r
VI["v_perm_b32"] = _perm
VF = {
    "v_add_f32": lambda a, b: a + b, "v_sub_f32": lambda a, b: a - b, "v_subrev_f32": lambda a, b: b - a, "v_mul_f32": lambda a, b: a * b,
    "v_max_f32": np.fmax, "v_min_f32": np.fmin, "v_max3_f32": lambda a, b, c: np.fmax(np.fmax(a, b), c),
    "v_fma_f32": lambda a, b, c: a.astype(np.float64) * b + c,
    "v_exp_f32": np.exp2, "v_log_f32": np.log2, "v_rcp_f32": lambda a: np.float32(1) / a, "v_rsq_f32": lambda a: 1 / np.sqrt(a), "v_sqrt_f32": np.sqrt,
}
```

```python
import numpy as np
def bf16(x):
    u = np.asarray(x, np.float32).view(np.uint32).astype(np.uint64)
    return (((u + 0x7FFF + ((u >> 16) & 1)) >> 16) & 0xFFFF).astype(np.uint16)
def f32(u): return (u.astype(np.uint32) << 16).view(np.float32)
def rb(x): return f32(bf16(x))
def make_inputs(seed=0, scale_q=1.0):
    r = np.random.default_rng(seed); n = lambda *s: rb(r.standard_normal(s).astype(np.float32))
    d = dict(A_x=n(2048, 576) * 0.05, A_wqkv=n(576, 1728) * 1.6, A_wo=n(576, 576) * 0.05, B_x=n(2048, 576) * 0.05,
             B_c_kv=n(2048, 512) * 1.6, B_w_q=n(576, 4096) * 6.4 * 576 ** -0.5 * scale_q, B_w_uk=n(512, 4096) * 6.4 * 512 ** -0.5,
             B_w_uv=n(512, 4096) * 1.6 * 512 ** -0.5, B_w_o=n(4096, 576) * 1.6 * 4096 ** -0.5, gate_w=n(576) * 0.8)
    return {k: bf16(v) for k, v in d.items()}
G = np.arange(64) >> 4; L15 = np.arange(64) & 15; I8 = np.arange(8)
PERM = 16 * (I8[None, :] >> 2) + 4 * G[:, None] + (I8[None, :] & 3)
def kv_ref(inp, h):
    c = f32(inp["B_c_kv"]); K = rb(c @ f32(inp["B_w_uk"])[:, 128 * h:128 * h + 128]); V = rb(c @ f32(inp["B_w_uv"])[:, 128 * h:128 * h + 128])
    return K, V
def kv_unpack(buf):
    b = f32(buf).reshape(33, 32, 64, 8); K = np.zeros((2048, 128), np.float32); V = K.copy()
    for n in range(32):
        for kb in range(4):
            for ks in range(4): K[(64 * n + 16 * kb + L15)[:, None], 32 * ks + PERM] = b[n, 4 * kb + ks]
        for db in range(8):
            for ks in range(2): V[64 * n + 32 * ks + PERM, (16 * db + L15)[:, None]] = b[n + 1, 16 + 2 * db + ks]
    return K, V
def kidx(ks):
    if ks < 128: return 32 * ks + PERM
    chi = 4 * (ks - 128) + G[:, None] + 0 * I8[None, :]; i = I8[None, :] + 0 * chi
    d = 8 * (chi % 3) + i
    return np.where(d < 18, 4096 + 18 * (chi // 3) + d, 4672)
def ctx_unpack(buf):
    b = f32(buf).reshape(128, 152, 64, 8); X = np.zeros((2048, 4673), np.float32)
    for ks in range(152):
        k = kidx(ks)
        X[(16 * np.arange(128)[:, None, None] + L15[None, :, None]), k[None]] = b[:, ks]
    return X[:, :4672]
def ctx_pack(X):
    X = np.concatenate([X, np.zeros((2048, 1), np.float32)], 1)
    b = np.zeros((128, 152, 64, 8), np.float32)
    for ks in range(152): b[:, ks] = X[(16 * np.arange(128)[:, None, None] + L15[None, :, None]), kidx(ks)[None]]
    return bf16(b).reshape(-1)
def wt_pack(inp):
    W = np.concatenate([inp["B_w_o"], inp["A_wo"], np.zeros((1, 576), np.uint16)], 0); b = np.zeros((152, 36, 64, 8), np.uint16)
    for ks in range(152): b[ks] = W[kidx(ks)[None], (16 * np.arange(36)[:, None, None] + L15[None, :, None])]
    return b
def gate(inp):
    gl = rb(f32(inp["A_x"]) @ f32(inp["gate_w"])); return 1 / (1 + np.exp(-gl.astype(np.float64)))
def ctx_ref(inp, h):
    x = f32(inp["A_x"]); g = gate(inp); K, V = kv_ref(inp, h)
    q = rb((x @ f32(inp["B_w_q"])[:, 128 * h:128 * h + 128]) * np.float32(128 ** -0.5 * 1.4426950408889634))
    s = (q @ K.T).astype(np.float64); s[np.triu_indices(2048, 1)] = -1e30
    p = np.exp2(s - s.max(1, keepdims=True))
    return ((p @ V) / p.sum(1, keepdims=True) * (1 - g)[:, None]).astype(np.float32)
def oa_ref(inp, h):
    x = f32(inp["A_x"]); g = gate(inp); W = f32(inp["A_wqkv"])
    q, k, v = [rb(x @ W[:, 576 * t + 18 * h:576 * t + 18 * h + 18]) for t in range(3)]
    idx = np.arange(2048)[:, None] - 2 * np.arange(8)[None, :]; m = idx >= 0; idc = np.where(m, idx, 0)
    lg = np.where(m, np.einsum("sd,swd->sw", q, k[idc]) * 18 ** -0.5, -1e9)
    p = np.exp(lg - lg.max(1, keepdims=True)); p = rb(p / p.sum(1, keepdims=True))
    return (np.einsum("sw,swd->sd", p, v[idc]) * g[:, None]).astype(np.float32)
def rel(a, b): return float(np.linalg.norm(a - b) / np.linalg.norm(b))
def wa_pack(inp):
    W = np.concatenate([inp["A_wqkv"].reshape(-1), np.zeros(8, np.uint16)]); out = np.zeros((32, 576, 8, 8), np.uint16)
    k = np.arange(576); f = ((k >> 1) & 1) | (((k >> 3) & 1) << 1)
    for h in range(32):
        rows = np.zeros((576, 16, 4), np.uint16)
        for gam in range(15):
            rows[:, gam] = W[(k * 1728 + (576, 1152, 0)[gam // 5] + 18 * h + 4 * (gam % 5))[:, None] + np.arange(4)]
        rows[:, 15, 0] = inp["gate_w"]
        rows = rows.reshape(576, 8, 8)
        for c in range(8): out[h, k, c ^ (f << 1)] = rows[:, c]
    return out
```

```python
import re
from emu import Emu, M0

_dec = Emu("")
SCC_W = re.compile(r"s_(add|sub|addc|lshl|lshr|ashr|and|or|xor|andn2|not|min|max|cmp|bfe|bitcmp|lshl\d_add|addk)")
SCC_R = re.compile(r"s_(cselect|addc|cbranch_scc)")

def decode(text):
    if text.endswith(":") or text.startswith(";"):
        i = _dec.decode("s_nop 0", 0); i.text = text; i.ws = 0; i.mn = "label"; return i
    if text.startswith("WAITVM"):
        i = _dec.decode("s_waitcnt vmcnt(0)", 0); i.text = text; return i
    i = _dec.decode(text.split(";")[0].strip(), 0); i.text = text
    rd, wr = list(i.rd), list(i.wr)
    i.rd, i.wr = rd, wr
    return i

def need_ws(p, i):
    rd, wr, pw = set(i.rd), set(i.wr), set(p.wr)
    isvalu = i.cls in "VT"; need = 0
    if p.cls == "M":
        if i.cls == "M":
            if pw & set(i.ab): need = 8
            elif pw & set(i.srcc) and p.wr != i.srcc: need = 6
        elif (pw & rd) or (pw & wr): need = 8
        if isvalu and set(p.srcc) & wr: need = max(need, 3)
    elif p.cls in "VT":
        pv = {r for r in pw if r[0] == 'v'}; ps = {r for r in pw if r[0] == 's'}
        if i.cls == "M" and pv & rd: need = 2
        if p.cls == "T" and i.cls == "V" and pv & rd: need = max(need, 1)
        if isvalu and ps & rd: need = max(need, 4 if i.mn in ("v_readlane_b32", "v_writelane_b32") else 2)
        if i.cls == "G" and ps & rd: need = max(need, 5)
        if i.cls == "S" and ps & rd: need = max(need, 2)
        if i.mn in ("v_readfirstlane_b32", "v_readlane_b32") and pv & rd: need = max(need, 1)
        if (i.mn.startswith("v_permlane") or "dpp" in i.mn) and pv & rd: need = max(need, 2)
        if p.mn.startswith("v_dot2") and (isvalu or i.cls == "M") and (pv & (rd | wr)):
            same = i.mn == p.mn
            accop = i.ops[0] if i.mn == "v_dot2c_f32_bf16" else (i.ops[3] if same else None)
            if not (same and not (pv & set(i.ops[1].regs() + i.ops[2].regs())) and pv & set(accop.regs())): need = max(need, 3)
    elif p.cls == "S":
        if ('s', M0) in pw and i.cls == "G" and "lds" in i.mods: need = 1
    elif p.cls == "G":
        if "store_dwordx4" in p.mn or "store_dwordx3" in p.mn:
            if set(p.ops[0].regs()) & wr: need = 2 if isvalu else 1
    return need

def short_ws(out, i):
    d = 0; miss = 0
    for p in reversed(out):
        if d >= 12: break
        miss = max(miss, need_ws(p, i) - d)
        d += p.ws
    return miss

class Node:
    def __init__(self, text, at=None, by=None, rd=(), wr=(), lead=None, tag=None, pin=False, bg=False):
        self.ins = [decode(t) for t in (text if isinstance(text, (list, tuple)) else [text])]
        self.rd = set(rd); self.wr = set(wr)
        for i in self.ins:
            self.rd |= set(i.rd); self.wr |= set(i.wr)
        self.is_m = self.ins[0].cls == "M"
        self.at, self.by, self.lead, self.tag, self.pin = at, by, lead, tag, pin
        self.preds = []; self.succs = []; self.gap = None; self.bg = bg
        for k, i in enumerate(self.ins):
            assert not SCC_R.match(i.mn) or any(SCC_W.match(x.mn) for x in self.ins[:k]), i.text
        for i in self.ins: i.target = tag
        self.isds = any(i.cls == "D" for i in self.ins)

class Region:
    DS_LEAD = 7
    LDS_Q = 16
    VM_Q = 0
    def __init__(self, name=""):
        self.nodes = []; self.nm = 0; self.name = name; self.bg = False
        self.cold = False
    def add(self, text, **kw):
        kw.setdefault("bg", self.bg)
        n = Node(text, **kw); n.seq = len(self.nodes); n.pos = self.nm
        if n.is_m: n.gap = self.nm; self.nm += 1
        self.nodes.append(n); return n
    def __call__(self, text, **kw): return self.add(text, **kw)

    def schedule(self, prev=(), verbose=False):
        nodes = self.nodes
        lastw, readers = {}, {}
        for n in nodes:
            ps = {}
            for r in n.rd:
                if r in lastw: ps[lastw[r].seq] = (lastw[r], "raw")
            for r in n.wr:
                if r in lastw: ps.setdefault(lastw[r].seq, (lastw[r], "waw"))
                for q in readers.get(r, ()):
                    if q is not n: ps.setdefault(q.seq, (q, "war"))
            for r in n.rd: readers.setdefault(r, []).append(n)
            for r in n.wr: lastw[r] = n; readers[r] = []
            n.preds = list(ps.values())
            for p, k in n.preds: p.succs.append((n, k))
        NM = self.nm
        for n in reversed(nodes):
            if n.is_m: n.dl = n.gap - 1; n.hard = n.gap - 1; continue
            dl = NM - 1 if n.by is None else n.by; hard = NM - 1
            for q, k in n.succs:
                lead = 0
                if k == "raw": lead = n.lead if n.lead is not None else (self.DS_LEAD if n.isds else 1)
                dl = min(dl, q.dl - lead); hard = min(hard, q.hard)
            n.dl, n.hard = dl, hard
        out = list(prev); n0 = len(out)
        todo = [n for n in nodes if not n.is_m]
        ms = [n for n in nodes if n.is_m]
        done = set(); over = 0
        def ready(n): return all(p.seq in done for p, k in n.preds)
        def cost(n, a_free):
            c = 0
            for k, i in enumerate(n.ins):
                if i.cls == "S":
                    if a_free and k == 0: continue
                    c += i.ws
                else: c += 2 if i.cls in "TG" else 1
            return c
        busy = {"D": 0, "G": 0}
        def res_cost(i): return (8 if "b64" in i.mn or "b32" in i.mn else 16) if i.cls == "D" else 64
        def res_ok(n, g):
            for i in n.ins:
                if i.cls in "DG" and busy[i.cls] - 16 * g > (self.LDS_Q if i.cls == "D" else self.VM_Q): return False
            return True
        def emit(n, g, force=False):
            for i in n.ins:
                if i.cls in "DG": busy[i.cls] = max(busy[i.cls], 16 * g) + res_cost(i)
                m = short_ws(out, i)
                if m > 0: out.append(decode(f"s_nop {m-1}"))
                out.append(i)
            n.gap = g; done.add(n.seq); todo.remove(n)
        def fill(g):
            nonlocal over
            a_free, cap = True, 2
            while True:
                cands = [n for n in todo if (n.at is None or n.at <= g) and ready(n)]
                cands.sort(key=lambda n: (n.bg, n.dl, n.seq))
                pick = None
                if a_free:
                    for n in cands:
                        if n.ins[0].cls == "S" and cost(n, True) <= cap and short_ws(out, n.ins[0]) == 0:
                            if cost(n, True) == 0 or n is cands[0] or n.dl <= g + 1: pick = n; break
                if pick is None:
                    ok = []
                    for n in cands:
                        if cost(n, a_free) > cap or short_ws(out, n.ins[0]) > 0: continue
                        if n.ins[0].cls == "S" and n.dl > g: continue
                        if n.ins[0].cls == "D" and out[-1].cls == "T": continue
                        if not res_ok(n, g): continue
                        ok.append(n)
                    if ok:
                        pick = ok[0]
                        if cap == 2 and cost(pick, a_free) == 1 and pick.dl > g:
                            after = max(busy["D"], 16 * g) + res_cost(pick.ins[0]) - 16 * g if pick.isds else busy["D"] - 16 * g
                            mates = [n for n in ok[1:] + [q for q, k in pick.succs if not q.is_m and q in todo and all(p.seq in done or p is pick for p, _ in q.preds)
                                                          and (q.at is None or q.at <= g) and k != "raw"]
                                     if cost(n, False) == 1 and n.ins[0].cls != "S" and (not n.isds or after <= self.LDS_Q)]
                            twos = [n for n in ok if cost(n, a_free) == 2]
                            if not mates and twos: pick = twos[0]
                if pick is None: break
                cap -= cost(pick, a_free); a_free = False; emit(pick, g)
            while True:
                f = [n for n in todo if n.hard <= g or (n.pin and n.at <= g)]
                f = [n for n in f if ready(n)]
                if not f: break
                f.sort(key=lambda n: (n.dl, n.seq)); over += cost(f[0], False)
                if verbose: print(f"  [{self.name}] forced at gap {g}: {f[0].ins[0].text}")
                emit(f[0], g)
        while True:
            f = [n for n in todo if (n.hard < 0 or (self.cold and n.isds and n.dl < 0)) and ready(n)]
            if not f: break
            emit(min(f, key=lambda n: (n.hard, n.seq)), -1)
        busy["D"] = 0
        for g, m in enumerate(ms):
            assert ready(m), (self.name, g, m.ins[0].text, [p.ins[0].text for p, k in m.preds if p.seq not in done])
            k = short_ws(out, m.ins[0])
            if k > 0:
                out.append(decode(f"s_nop {k-1}")); over += k
                if verbose: print(f"  [{self.name}] nop {k} before mfma {g}")
            out.append(m.ins[0]); done.add(m.seq)
            fill(g)
        assert not todo, (self.name, [n.ins[0].text for n in todo])
        if verbose:
            late = [(n.ins[0].text, n.gap - n.dl) for n in nodes if not n.is_m and n.gap > n.dl + 2]
            print(f"[{self.name}] mfma {NM} overflow slots {over} late {len(late)} {late[:6]}")
        return out[n0:]

def plain(texts, prev=()):
    out = list(prev); n0 = len(out)
    for t in texts:
        i = decode(t) if isinstance(t, str) else t
        i.target = getattr(i, "target", None)
        m = short_ws(out, i)
        if m > 0: out.append(decode(f"s_nop {m-1}"))
        out.append(i)
    return out[n0:]

def tagged(text, tag):
    i = decode(text); i.target = tag; return i

def fix_waits(ins, carry=(), age=5):
    out = []
    q = [(set(c), -100) for c in carry]
    nm = 0; last_m = None
    for i in ins:
        if i.text.startswith("WAITVM") and i.text.endswith("+lgkm"): q = []
        if i.mn == "s_waitcnt" and "lgkmcnt" in i.mods and not i.text.startswith("WAITVM"):
            q = q[len(q) - i.mods["lgkmcnt"]:] if i.mods["lgkmcnt"] < len(q) else q
            if i.mods["lgkmcnt"] == 0: q = []
        touch = set(i.rd) | (set(i.wr) if i.cls != "D" else set())
        k = max((n for n, e in enumerate(q) if e[0] & touch), default=-1)
        if len(q) >= 15 and i.cls == "D" and k < 0: k = 0
        if k >= 0:
            pos = len(out); nafter = 0
            if last_m is not None and (last_m + 1 >= len(out) or out[last_m + 1].cls != "S"):
                later = sum(1 for x in out[last_m + 1:] if x.cls == "D")
                if k < len(q) - later: pos = last_m + 1; nafter = later
            while k + 1 < len(q) - nafter and q[k + 1][1] <= nm - age: k += 1
            cnt = len(q) - nafter - (k + 1)
            merged = False
            if pos == len(out) and last_m is not None and last_m + 1 < len(out):
                x = out[last_m + 1]
                later = sum(1 for y in out[last_m + 1:] if y.cls == "D")
                if x.mn == "s_waitcnt" and not x.text.startswith("WAITVM") and k < len(q) - later:
                    c2 = len(q) - later - (k + 1)
                    vm = f"vmcnt({x.mods['vmcnt']}) " if "vmcnt" in x.mods else ""
                    out[last_m + 1] = decode(f"s_waitcnt {vm}lgkmcnt({min(c2, x.mods.get('lgkmcnt', 15))})"); merged = True
            if not merged: out.insert(pos, decode(f"s_waitcnt lgkmcnt({cnt})"))
            q = q[k + 1:]
        out.append(i)
        if i.cls == "D": q.append((set(i.wr), nm))
        if i.cls == "M": nm += 1; last_m = len(out) - 1
    for n, i in enumerate(out):
        if i.text.startswith("WAITVM"):
            tags = i.text.split()[1:]; cnt = 0; found = False
            for p in reversed(out[:n]):
                if p.cls == "G":
                    if getattr(p, "target", None) in tags: found = True; break
                    cnt += 1
            assert found, i.text
            assert not any(p.cls == "G" and getattr(p, "target", None) in tags for p in out[n:]), i.text
            assert cnt < 64
            out[n] = decode(f"s_waitcnt vmcnt({cnt})" + (" lgkmcnt(0)" if "+lgkm" in tags else ""))
    return out, [sorted(e[0]) for e in q]

def texts(ins): return [i.text for i in ins]
```

```python
import sys, time
import numpy as np
import gen, refnp as R
from emu import *
def main(h=5, scale_q=1.0, js=range(8)):
    txt = gen.generate()
    txt = "\n".join(("buffer_inv sc1" if l.strip().startswith("global_load_dword") else ("s_nop 0" if "s_getpc" in l else l)) for l in txt.split("\n"))
    e = Emu(txt); inp = R.make_inputs(0, scale_q)
    ptrs = [e.mem.add(inp[k], k) for k in inp]
    out = np.full(2048 * 576, 0x7FC0, np.uint16); dbg = np.zeros(64, np.uint32); ws = np.full(0x5000000 // 2, 0x7FC1, np.uint16)
    po, pd, pw = e.mem.add(out, "out"), e.mem.add(dbg, "dbg"), e.mem.add(ws, "ws")
    wsb = e.mem.find(pw)[1].view(np.uint16); db = e.mem.find(pd)[1].view(np.uint32)
    wg = [(h >> 2) + 8 * (h & 3) + 32 * j for j in js]
    mine = np.zeros(4672, bool); mine[128 * h:128 * h + 128] = True; mine[4096 + 18 * h:4096 + 18 * h + 18] = True
    rng = np.random.default_rng(1); X0 = R.rb(rng.standard_normal((2048, 4672)).astype(np.float32)); X0[:, mine] = np.nan
    C = slice(gen.WS_CTX // 2, (gen.WS_CTX + gen.CTX_SZ) // 2); T = slice(gen.WS_WT // 2, (gen.WS_WT + gen.WT_SZ) // 2)
    wsb[C] = R.ctx_pack(X0)
    wr = R.wt_pack(inp).reshape(152, 36, 512); wt0 = wr.copy(); wt0[4 * h:4 * h + 4] = 0x7FC1
    for b in wg:
        if b < 144: wt0[128 + b // 6, 6 * (b % 6):6 * (b % 6) + 6] = 0x7FC1
    wsb[T] = wt0.reshape(-1)
    WA = slice(gen.WS_WA // 2, (gen.WS_WA + 32 * gen.WA_SZ) // 2); war = R.wa_pack(inp); wa0 = war.copy()
    for b in wg:
        if b < 192: wa0[:, 3 * b:3 * b + 3] = 0x7FC1
    wsb[WA] = wa0.reshape(-1)
    cv = wsb[C].reshape(128, 152 * 4, 128); cv[:, 512 + 3 * h + 2] = 0x7FC1
    db[::2] = 16; db[2 * h] = 0
    wsb[gen.WS_FL // 2:(gen.WS_FL + gen.FL_SZ) // 2].view(np.uint32)[:] = 3
    xb = wsb[gen.WS_X // 2:(gen.WS_X + 256 * gen.X_WG) // 2].reshape(256, 3, 4, 3, 64, 8)
    for j in js: xb[32 * j + h] = R.bf16(rng.standard_normal((3, 4, 3, 64, 8)))
    def region(off):
        for nm, lo in (("x", gen.WS_X), ("fl", gen.WS_FL), ("wa", gen.WS_WA), ("wt", gen.WS_WT), ("ctx", gen.WS_CTX), ("kv", 0)):
            if off >= lo:
                if nm == "ctx" and ((off - lo) % gen.CTX_RB) >= 128 * 1024: return "oa"
                return nm
    def hook(w, i, buf, offs, vals):
        g = w.wg; g.closed = getattr(g, "closed", set()); g.nsig = getattr(g, "nsig", 0); cover = None; waves = g.waves
        if buf == "ws" and "sc1" not in i.mods: e.w(i, "ws store without sc1")
        if buf == "dbg": g.nsig += 1; cover = {1: ["wa", "fl"], 2: ["wt"]}.get(g.nsig, [])
        elif buf == "ws" and region(offs[0]) == "fl":
            if vals[0] == 0: return
            if offs[0] >= gen.WS_FL + 32768: cover = ["x"]; waves = [w]
            else: cover = {1: ["kv"], 2: ["ctx"], 3: ["oa"]}[int(vals[0])]
        elif buf == "ws":
            if (region(offs[0]), w.wid) in g.closed: e.w(i, "store after its signal")
            return
        else: return
        for v in waves:
            for c in cover: g.closed.add((c, v.wid))
            for q in v.vmq:
                if q[0] == "st" and q[2] and q[2][0] == "ws" and region(q[2][1]) in cover: e.w(i, f"SIGNAL before store of line {q[2][3]} (wave {v.wid}) was waited for")
        sigs.append((g.id, w.wid, cover))
    sigs = []; e.on_store = hook
    t = time.time(); wgs = e.launch(gen.NAME + "_kernel", wg + [256], 163840, ptrs + [po, pd, pw]); print("emu time", time.time() - t)
    for g in (wgs[0], wgs[7]): print("wg", g.id, "cycles", g.waves[0].t, g.waves[0].marks, "ninst", g.waves[0].ninst)
    print("signals of first wg:", [c for g_, w_, c in sigs if g_ == wg[0]])
    K, V = R.kv_unpack(wsb[h * gen.HEADSZ // 2:(h + 1) * gen.HEADSZ // 2]); Kr, Vr = R.kv_ref(inp, h)
    print("K rel", R.rel(K, Kr), "V rel", R.rel(V, Vr))
    X = R.ctx_unpack(wsb[C])
    cr = R.ctx_ref(inp, h); c = X[:, 128 * h:128 * h + 128]
    print("ctx rel", R.rel(c, cr), [round(R.rel(c[128 * t:128 * t + 128], cr[128 * t:128 * t + 128]), 4) for t in range(16)])
    print("oA rel", R.rel(X[:, 4096 + 18 * h:4096 + 18 * h + 18], R.oa_ref(inp, h)))
    print("untouched elsewhere:", bool((X[:, ~mine] == X0[:, ~mine]).all()), "WT ok", bool((wsb[T] == wr.reshape(-1)).all()), "dbg", db[2 * h], "WA ok", bool((wsb[WA] == war.reshape(-1)).all()))
    o = R.f32(e.mem.find(po)[1].view(np.uint16)).reshape(2048, 576)
    sg = h >> 3; sl = np.zeros(4672, bool); sl[1024 * sg:1024 * sg + 1024] = True; sl[4096 + 144 * sg:4096 + 144 * sg + 144] = True
    part = X[:, sl] @ np.concatenate([R.f32(inp["B_w_o"]), R.f32(inp["A_wo"])], 0)[sl]
    ref = np.full((2048, 576), np.nan, np.float32); es = []
    e8 = np.arange(8)
    for j in js:
        T = 15 - j if h & 4 else j
        for w in range(4):
            for cb in range(9):
                rows = (128 * T + 32 * w + R.L15[:, None] + 16 * (e8 >> 2)[None]); cols = 16 * (8 * (cb >> 1) + 2 * (h & 3) + (cb & 1) if cb < 8 else 32 + (h & 3)) + 4 * R.G[:, None] + (e8 & 3)[None]
                own = cb >> 1 if cb < 8 else w; f = cb & 1 if cb < 8 else 2
                if own == sg: ref[rows, cols] = part[rows, cols] + R.f32(xb[32 * j + h, :, w, f]).sum(0)
                else:
                    v = (own - sg) & 3
                    es.append(R.rel(R.f32(xb[32 * j + ((h + 8 * v) & 31), 3 - v, w, f]), part[rows, cols]))
    m = ~np.isnan(o); print("out written", m.sum(), "same set", (m == ~np.isnan(ref)).all(), "rel", R.rel(o[m], ref[m]), "sent max rel", max(es), len(es),
                            "x written", (xb != 0x7FC1).any(-1).any(-1).sum())
    cs = sorted(e.conf.items(), key=lambda x: -x[1]); print("bank conflicts:", len(cs), [(k[1][:28], v) for k, v in cs[:40:4]])
if __name__ == "__main__":
    main(h=int(sys.argv[1]) if len(sys.argv) > 1 else 5, scale_q=float(sys.argv[2]) if len(sys.argv) > 2 else 1.0)
```

```python
import re, sys
import numpy as np

U32 = np.uint32
LANES = np.arange(64, dtype=np.uint32)
VCC, M0, EXEC = 106, 124, 126
np.seterr(all="ignore")

class EmuError(Exception): pass

def f2u(x): return np.asarray(x, dtype=np.float32).view(np.uint32)
def u2f(x): return np.asarray(x, dtype=np.uint32).view(np.float32)
def bf16_rne(f):
    u = f2u(f).astype(np.uint64)
    r = ((u + 0x7FFF + ((u >> 16) & 1)) >> 16).astype(np.uint32) & 0xFFFF
    nan = np.isnan(np.asarray(f, dtype=np.float32))
    return np.where(nan, 0x7FC0, r).astype(np.uint32)

INLINE_F = {"0.5": 0.5, "-0.5": -0.5, "1.0": 1.0, "-1.0": -1.0, "2.0": 2.0, "-2.0": -2.0, "4.0": 4.0, "-4.0": -4.0}

class Op:
    __slots__ = ("k", "i", "n", "val", "neg", "abs")
    def __init__(self, k, i=0, n=1, val=0): self.k, self.i, self.n, self.val, self.neg, self.abs = k, i, n, val, False, False
    def regs(self):
        if self.k == 'v': return [('v', self.i + j) for j in range(self.n)]
        if self.k == 's': return [('s', self.i + j) for j in range(self.n)]
        return []

def parse_op(t, accum=256):
    t = t.strip()
    neg = ab = False
    if t in INLINE_F: return Op('c', val=int(f2u(INLINE_F[t])))
    if t.startswith("-") and not re.match(r"-\d|-0x", t): neg = True; t = t[1:]
    m = re.match(r"abs\((.*)\)$", t) or re.match(r"\|(.*)\|$", t)
    if m: ab = True; t = m.group(1)
    m = re.match(r"([vas])(\d+)$", t)
    if m: k, i, n = m.group(1), int(m.group(2)), 1
    else:
        m = re.match(r"([vas])\[(\d+):(\d+)\]$", t)
        if m: k, i, n = m.group(1), int(m.group(2)), int(m.group(3)) - int(m.group(2)) + 1
        else:
            named = {"vcc": (VCC, 2), "vcc_lo": (VCC, 1), "vcc_hi": (VCC + 1, 1), "exec": (EXEC, 2), "exec_lo": (EXEC, 1),
                     "exec_hi": (EXEC + 1, 1), "m0": (M0, 1)}
            if t in named: return Op('s', *named[t])
            if t == "off": return Op('off')
            try: return Op('c', val=int(t, 0))
            except ValueError: return Op('label', val=t)
    if k == 'a': k, i = 'v', i + accum
    else:
        if k == 'v': assert i + n <= accum, t
    o = Op(k, i, n); o.neg, o.abs = neg, ab
    return o

class Inst:
    __slots__ = ("mn", "ops", "mods", "line", "text", "cls", "rd", "wr", "fn", "target", "ws", "srcc", "ab")

def split_ops(s):
    out, d, cur = [], 0, ""
    for ch in s:
        if ch in "[(": d += 1
        if ch in "])": d -= 1
        if ch == "," and d == 0: out.append(cur); cur = ""
        else: cur += ch
    if cur.strip(): out.append(cur)
    return out

TRANS = ("v_exp_f32", "v_log_f32", "v_rcp_f32", "v_rsq_f32", "v_sqrt_f32")

class Mem:
    def __init__(self): self.bufs = []; self.next = 0x7000_0000_0000
    def add(self, arr, name):
        a = np.ascontiguousarray(arr).view(np.uint8).reshape(-1)
        base = self.next; self.next += (len(a) + (1 << 22)) // (1 << 21) * (1 << 21)
        self.bufs.append((base, a, name)); return base
    def find(self, addr):
        for b, a, n in self.bufs:
            if b <= addr < b + len(a) + 1: return b, a, n
        raise EmuError(f"address {addr:#x} not in any buffer")

class WG:
    def __init__(self, lds_bytes, nw):
        self.lds = np.zeros(163840 // 4, np.uint32); self.lds[:] = 0x7FC1DEAD
        self.size = lds_bytes
        n = 163840 // 4
        self.w_wave = np.full(n, -1, np.int8)
        self.w_epoch = np.full(n, -1, np.int32)
        self.r_epoch = np.full((nw, n), -1, np.int32)
        self.epoch = 0; self.waves = []; self.arrived = 0

PEND = 1 << 30

class Wave:
    def __init__(self, emu, wg, wid, wgid, pc):
        self.e, self.wg, self.wid, self.pc = emu, wg, wid, pc
        self.s = np.zeros(128, np.uint64); self.sw = np.zeros(128, bool)
        self.v = np.full((512, 64), 0x7FC0BEEF, np.uint32); self.vw = np.zeros(512, bool)
        self.scc = 0; self.done = False; self.at_bar = False
        self.s[0] = emu.kernarg & 0xFFFFFFFF; self.s[1] = emu.kernarg >> 32; self.s[2] = wgid
        self.sw[[0, 1, 2, EXEC, EXEC + 1]] = True
        self.s[EXEC] = self.s[EXEC + 1] = 0xFFFFFFFF
        self.v[0] = LANES + 64 * wid; self.vw[0] = True
        self.em = np.ones(64, bool); self.full = True
        self.vmq = []; self.lgq = []; self.pend = {}
        self.hist = []; self.slot = 0
        self.t = 0; self.mfma_free = 0; self.vec_ok = 0; self.marks = []; self.ninst = 0; self.last_trans = False
    def upd_exec(self):
        x = int(self.s[EXEC]) | (int(self.s[EXEC + 1]) << 32)
        self.em = ((x >> np.arange(64, dtype=np.uint64).astype(object)) & 1).astype(bool); self.full = x == (1 << 64) - 1
    def rs(self, o):
        if o.k == 'c': return o.val & 0xFFFFFFFF
        return int(self.s[o.i])
    def rs64(self, o):
        if o.k == 'c': return o.val & 0xFFFFFFFFFFFFFFFF
        return int(self.s[o.i]) | (int(self.s[o.i + 1]) << 32)
    def wsr(self, o, x):
        self.s[o.i] = x & 0xFFFFFFFF
        if o.i in (EXEC, EXEC + 1): self.upd_exec()
    def ws64(self, o, x):
        self.s[o.i] = x & 0xFFFFFFFF; self.s[o.i + 1] = (x >> 32) & 0xFFFFFFFF
        if o.i == EXEC: self.upd_exec()
    def rv(self, o, j=0):
        if o.k == 'v': return self.v[o.i + j]
        if o.k == 's': return np.full(64, int(self.s[o.i + j]), np.uint32)
        return np.full(64, o.val & 0xFFFFFFFF, np.uint32)
    def rf(self, o, j=0):
        x = self.rv(o, j)
        if o.k == 'c' and -16 <= o.val <= 64 and o.val != 0: raise EmuError("int inline const used as float")
        if o.abs: x = x & U32(0x7FFFFFFF)
        if o.neg: x = x ^ U32(0x80000000)
        return x.view(np.float32)
    def wv(self, o, x, j=0):
        x = np.asarray(x)
        if x.dtype == np.float32: x = x.view(np.uint32)
        if self.full: self.v[o.i + j] = x
        else: self.v[o.i + j] = np.where(self.em, x, self.v[o.i + j])
    def mask(self, o):
        x = self.rs64(o)
        return np.array([(x >> i) & 1 for i in range(64)], bool)
    def wmask(self, o, m):
        m = m & self.em
        self.ws64(o, int(np.packbits(m[::-1]).view(">u8")[0]))

def sx(x): x = int(x) & 0xFFFFFFFF; return x - (1 << 32) if x >> 31 else x

B128_GROUPS = [list(range(0, 4)) + list(range(12, 16)) + list(range(20, 28)), list(range(4, 12)) + list(range(16, 20)) + list(range(28, 32))]
B128_GROUPS += [[x + 32 for x in g] for g in B128_GROUPS]

class Emu:
    def __init__(self, text, accum=256):
        self.accum = accum
        self.code = []; self.labels = {}; self.mem = Mem(); self.warn = {}; self.conf = {}
        self.strict_uninit = True; self.code_reach = {}
        self.on_store = None
        in_text = True
        for ln, raw in enumerate(text.split("\n"), 1):
            l = raw.split(";")[0].strip()
            mk = re.search(r";\s*@mark\s+(\S+)", raw)
            if mk and not l:
                i = Inst(); i.mn = "@mark"; i.text = mk.group(1); i.line = ln; i.cls = "X"; i.rd = i.wr = []; i.ws = 0; i.fn = None
                self.code.append(i); continue
            if not l: continue
            if l.startswith(".section"): in_text = False
            if l.startswith(".text"): in_text = True
            if l.startswith(".") and not l.endswith(":"): continue
            if not in_text: continue
            if l.endswith(":"): self.labels[l[:-1]] = len(self.code); continue
            self.code.append(self.decode(l, ln))
        for i in self.code:
            if i.mn.startswith("s_cbranch") or i.mn == "s_branch": i.target = self.labels[i.ops[0].val]
    def w(self, inst, msg):
        k = (inst.line, msg)
        if k not in self.warn:
            self.warn[k] = 0; print(f"[emu] line {inst.line}: {inst.text}: {msg}")
        self.warn[k] += 1

    def decode(self, l, ln):
        p = l.split(None, 1); mn = re.sub(r"_e(32|64)$", "", p[0]); rest = p[1] if len(p) > 1 else ""
        i = Inst(); i.mn, i.line, i.text = mn, ln, l; i.mods = {}; i.ws = 1; i.srcc = []; i.ab = []
        if mn == "s_waitcnt":
            i.ops = []; i.mods = {k: int(x) for k, x in re.findall(r"(\w+)\((\d+)\)", rest)}
        elif mn in ("buffer_inv", "buffer_wbl2"):
            i.ops = []
        else:
            parts = split_ops(rest)
            if parts:
                last = parts[-1].strip().split()
                parts[-1] = last[0]
                for m in last[1:]:
                    if ":" in m: k, x = m.split(":", 1); i.mods[k] = x
                    else: i.mods[m] = True
            i.ops = [parse_op(x, self.accum) for x in parts] if mn != "s_getreg_b32" else [parse_op(parts[0])]
        o = i.ops
        R = lambda *xs: [r for x in xs for r in x.regs()]
        if mn.startswith("v_mfma"):
            i.cls = "M"; i.wr = R(o[0]); i.rd = R(o[1], o[2], o[3]); i.srcc = R(o[3]); i.ab = R(o[1], o[2])
        elif mn.startswith("v_"):
            i.cls = "T" if mn in TRANS else "V"
            if mn.startswith("v_permlane") and "swap" in mn: i.wr = R(o[0], o[1]); i.rd = R(o[0], o[1])
            elif mn in ("v_fmac_f32", "v_dot2c_f32_bf16"): i.wr = R(o[0]); i.rd = R(*o)
            elif mn in ("v_add_co_u32",): i.wr = R(o[0], o[1]); i.rd = R(*o[2:])
            elif mn in ("v_addc_co_u32",): i.wr = R(o[0], o[1]); i.rd = R(*o[2:])
            elif mn == "v_nop": i.wr = i.rd = []
            else: i.wr = R(o[0]); i.rd = R(*o[1:])
        elif mn.startswith("ds_"):
            i.cls = "D"
            if mn.startswith("ds_read") or mn.startswith("ds_bperm"): i.wr = R(o[0]); i.rd = R(*o[1:])
            else: i.wr = []; i.rd = R(*o)
        elif mn.startswith("buffer_") or mn.startswith("global_"):
            i.cls = "G"
            if mn in ("buffer_inv", "buffer_wbl2"): i.wr = i.rd = []
            elif mn.startswith("buffer_load") and "lds" in i.mods: i.wr = []; i.rd = R(*o) + [('s', M0)]
            elif mn.startswith("buffer_load") or mn.startswith("global_load"): i.wr = R(o[0]); i.rd = R(*o[1:])
            elif mn.startswith("buffer_atomic") and "sc0" in i.mods: i.wr = R(o[0]); i.rd = R(*o)
            else: i.wr = []; i.rd = R(*o)
        else:
            i.cls = "S"
            if mn.startswith("s_cmp") or mn.startswith("s_bitcmp"): i.wr = []; i.rd = R(*o)
            elif mn.startswith("s_cbranch_vcc"): i.wr = []; i.rd = [('s', VCC), ('s', VCC + 1)]
            elif mn in ("s_waitcnt", "s_barrier", "s_nop", "s_endpgm", "s_sleep", "s_setprio", "s_branch") or mn.startswith("s_cbranch"):
                i.wr = i.rd = []
            elif mn in ("s_addk_i32", "s_mulk_i32"): i.wr = R(o[0]); i.rd = R(o[0])
            else: i.wr = R(o[0]); i.rd = R(*o[1:])
            if mn == "s_nop": i.ws = o[0].val + 1
        i.fn = getattr(self, "x_" + mn, None)
        if i.fn is None:
            if mn in SOP2: i.fn = self.sop2
            elif mn in SCMP: i.fn = self.scmp
            elif mn in VI: i.fn = self.vint
            elif mn in VF: i.fn = self.vflt
            elif mn.startswith("v_cmp_"): i.fn = self.vcmp
            elif mn.startswith("s_load_dword"): i.fn = self.sload
            elif mn.startswith("ds_read_b") and "tr" not in mn: i.fn = self.dsread
            elif mn.startswith("ds_write_b"): i.fn = self.dswrite
            elif mn.startswith("buffer_load"): i.fn = self.bload
            elif mn.startswith("buffer_store"): i.fn = self.bstore
            else: raise EmuError(f"line {ln}: unsupported instruction {l}")
        return i

    def hazards(self, w, i):
        rd, wr = set(i.rd), set(i.wr)
        isvalu = i.cls in "VT"
        for (slot, p) in w.hist:
            d = w.slot - slot - p.ws
            need = 0; pw = set(p.wr)
            if p.cls == "M":
                four = "16x16" in p.mn
                if i.cls == "M":
                    if pw & set(i.ab): need = 8 if four else 12
                    elif pw & set(i.srcc) and (p.wr != i.srcc or p.mn != i.mn): need = 6 if four else 10
                    elif pw & wr and not (pw & set(i.srcc)): need = 0
                elif (pw & rd) or (pw & wr): need = 8 if four else 12
                if isvalu and set(p.srcc) & wr: need = max(need, 3 if four else 7)
            elif p.cls in "VT":
                pv = {r for r in pw if r[0] == 'v'}; ps = {r for r in pw if r[0] == 's'}
                if i.cls == "M" and pv & rd: need = 2
                if p.cls == "T" and i.cls == "V" and pv & rd: need = max(need, 1)
                if isvalu and ps & rd: need = max(need, 4 if i.mn in ("v_readlane_b32", "v_writelane_b32") else 2)
                if i.cls == "G" and ps & rd: need = max(need, 5)
                if i.mn in ("v_readfirstlane_b32", "v_readlane_b32") and pv & rd: need = max(need, 1)
                if (i.mn.startswith("v_permlane") or "dpp" in i.mn) and pv & rd: need = max(need, 2)
                if p.mn.startswith("v_dot2") and (isvalu or i.cls == "M") and (pv & (rd | wr)):
                    same = i.mn == p.mn
                    accop = i.ops[0] if i.mn == "v_dot2c_f32_bf16" else (i.ops[3] if same else None)
                    if not (same and not (pv & set(i.ops[1].regs() + i.ops[2].regs())) and pv & set(accop.regs())): need = max(need, 3)
                if ("sdwa" in p.mn or "op_sel" in p.mods) and isvalu and pv & (rd | wr) and not p.mn.startswith("v_pk"): need = max(need, 1)
            elif p.cls == "S":
                if ('s', M0) in pw and i.cls == "G" and "lds" in i.mods: need = 1
            elif p.cls == "G":
                if ("store_dwordx4" in p.mn or "store_dwordx3" in p.mn):
                    data = set(p.ops[0].regs() if p.mn.startswith("buffer") else p.ops[1].regs())
                    if data & wr: need = 2 if isvalu else 1
            if d < need: self.w(i, f"HAZARD: needs {need} wait states after line {p.line} ({p.text}), has {d}")
        w.hist.append((w.slot, i)); w.slot += i.ws
        while w.hist and w.slot - w.hist[0][0] > 24: w.hist.pop(0)

    def timing(self, w, i):
        t = w.t
        if i.cls == "M":
            t = max(t, w.mfma_free, w.vec_ok)
            w.mfma_free = t + (16 if "16x16" in i.mn else 32); w.vec_ok = t + 8; w.t = t + 4
        elif i.cls == "S": w.t = t + 4 * i.ws
        else:
            t = max(t, w.vec_ok)
            if i.cls == "D" and w.last_trans: t += 8
            w.t = t + (8 if i.cls in "TG" else 4)
        w.last_trans = i.cls == "T"

    def launch(self, kernel, wgids, lds, ptrs, nw=4, max_inst=2_000_000):
        ka = np.array(ptrs, dtype=np.uint64); self.kernarg = self.mem.add(ka, "kernarg")
        wgs = []
        for g in wgids:
            wg = WG(lds, nw); wg.id = g
            wg.waves = [Wave(self, wg, k, g, self.labels[kernel]) for k in range(nw)]; wgs.append(wg)
        code = self.code
        while True:
            alive = False; progress = False
            for wg in wgs:
                for w in wg.waves:
                    if w.done: continue
                    alive = True
                    if w.at_bar: continue
                    progress = True
                    while True:
                        i = code[w.pc]; w.pc += 1
                        if i.cls == "X": w.marks.append((i.text, w.t)); continue
                        w.ninst += 1
                        if w.ninst > max_inst: raise EmuError(f"instruction limit at line {i.line}")
                        for r in i.rd:
                            if r in w.pend: self.w(i, f"reads {r} with load pending (line {w.pend[r]})")
                            if not (w.vw if r[0] == 'v' else w.sw)[r[1]] and self.strict_uninit: self.w(i, f"reads unwritten {r}")
                        for r in i.wr:
                            if r in w.pend and not (i.cls == "D" and w.pend[r] < 0): self.w(i, f"writes {r} with load pending (line {w.pend[r]})")
                            (w.vw if r[0] == 'v' else w.sw)[r[1]] = True
                        self.hazards(w, i); self.timing(w, i)
                        try:
                            y = i.fn(w, i)
                        except EmuError as ex:
                            raise EmuError(f"wg {wg.id} wave {w.wid} line {i.line} [{i.text}]: {ex}")
                        if y: break
                live = [w for w in wg.waves if not w.done]
                if live and all(w.at_bar for w in live):
                    wg.epoch += 1; tm = max(w.t for w in live)
                    for w in live: w.at_bar = False; w.t = tm
                    progress = True
            if not alive: break
            if not progress: raise EmuError("deadlock")
        return wgs

    def sop2(self, w, i):
        o = i.ops; f, b64, setscc = SOP2[i.mn]
        if b64:
            r = f(w.rs64(o[1]), (w.rs64(o[2]) if o[2].n == 2 or o[2].k == 'c' else w.rs(o[2])) if len(o) > 2 else 0, w.scc)
            if isinstance(r, tuple): r, w.scc = r
            elif setscc: w.scc = int((r & 0xFFFFFFFFFFFFFFFF) != 0)
            w.ws64(o[0], r)
        else:
            r = f(w.rs(o[1]), w.rs(o[2]) if len(o) > 2 else 0, w.scc)
            if isinstance(r, tuple): r, w.scc = r
            elif setscc: w.scc = int((r & 0xFFFFFFFF) != 0)
            w.wsr(o[0], r)
    def scmp(self, w, i):
        if i.mn.endswith("64"): w.scc = int(SCMP[i.mn](w.rs64(i.ops[0]), w.rs64(i.ops[1])))
        else: w.scc = int(SCMP[i.mn](w.rs(i.ops[0]), w.rs(i.ops[1])))
    def x_s_addk_i32(self, w, i): w.wsr(i.ops[0], w.rs(i.ops[0]) + i.ops[1].val); w.scc = 0
    def x_s_and_saveexec_b64(self, w, i):
        e = int(w.s[EXEC]) | (int(w.s[EXEC + 1]) << 32); m = w.rs64(i.ops[1])
        w.ws64(i.ops[0], e); w.ws64(Op('s', EXEC, 2), e & m); w.scc = int((e & m) != 0)
    def sload(self, w, i):
        o = i.ops; a = w.rs64(o[1]) + w.rs(o[2]); b, arr, _ = self.mem.find(a)
        d = arr[a - b:a - b + 4 * o[0].n].view(np.uint32)
        for j in range(o[0].n): w.s[o[0].i + j] = d[j]; w.pend[('s', o[0].i + j)] = i.line
        w.lgq.append(("smem", i.wr, None))
    def x_s_memtime(self, w, i): w.ws64(i.ops[0], w.t); w.lgq.append(("smem", [], None))
    x_s_memrealtime = x_s_memtime
    def x_s_getpc_b64(self, w, i): w.ws64(i.ops[0], 0); w.pc_line = i.line
    def x_global_load_dword(self, w, i):
        self.code_reach[i.line] = max(self.code_reach.get(i.line, 0), int(w.rv(i.ops[1]).max()))
        for r in i.wr: w.pend[r] = i.line
        w.vmq.append(("ld", i.wr, None))
    def x_s_getreg_b32(self, w, i): w.wsr(i.ops[0], w.wg.id & 7)
    def x_s_nop(self, w, i): pass
    x_s_setprio = x_v_nop = x_s_nop
    def x_buffer_inv(self, w, i): w.vmq.append(("inv", [], None))
    x_buffer_wbl2 = x_buffer_inv
    def x_s_sleep(self, w, i): return True
    def x_s_endpgm(self, w, i): w.done = True; return True
    def x_s_barrier(self, w, i): w.at_bar = True; return True
    def x_s_branch(self, w, i): w.pc = i.target; w.t += 16
    def br(self, w, i, c):
        if c: w.pc = i.target; w.t += 16
    def x_s_cbranch_scc0(self, w, i): self.br(w, i, not w.scc)
    def x_s_cbranch_scc1(self, w, i): self.br(w, i, w.scc)
    def x_s_cbranch_vccz(self, w, i): self.br(w, i, w.rs64(Op('s', VCC, 2)) == 0)
    def x_s_cbranch_vccnz(self, w, i): self.br(w, i, w.rs64(Op('s', VCC, 2)) != 0)
    def x_s_cbranch_execz(self, w, i): self.br(w, i, not w.em.any())
    def x_s_cbranch_execnz(self, w, i): self.br(w, i, w.em.any())
    def retire(self, w, e):
        kind, regs, idx = e
        still = {r for q in (w.lgq, w.vmq) for x in q for r in x[1]}
        for r in regs:
            if r not in still: w.pend.pop(r, None)
        wg = w.wg
        if kind in ("dma", "dsw"):
            m = (wg.w_wave[idx] == w.wid) & (wg.w_epoch[idx] == PEND)
            wg.w_epoch[idx[m]] = wg.epoch
        elif kind == "dsr":
            wg.r_epoch[w.wid, idx] = wg.epoch
    def x_s_waitcnt(self, w, i):
        if "vmcnt" in i.mods:
            assert i.mods["vmcnt"] <= 63
            while len(w.vmq) > i.mods["vmcnt"]: self.retire(w, w.vmq.pop(0))
        if "lgkmcnt" in i.mods:
            n = i.mods["lgkmcnt"]; assert n <= 15
            if n and any(e[0] == "smem" for e in w.lgq): self.w(i, "counted lgkmcnt with SMEM outstanding")
            while len(w.lgq) > n: self.retire(w, w.lgq.pop(0))

    def vint(self, w, i):
        o = i.ops; w.wv(o[0], VI[i.mn](*[w.rv(x) for x in o[1:]]).astype(np.uint32))
    def vflt(self, w, i):
        o = i.ops; w.wv(o[0], VF[i.mn](*[w.rf(x) for x in o[1:]]).astype(np.float32))
    def x_v_fmac_f32(self, w, i):
        o = i.ops; w.wv(o[0], (w.rf(o[1]).astype(np.float64) * w.rf(o[2]) + w.rf(o[0])).astype(np.float32))
    def vcmp(self, w, i):
        _, _, c, t = i.mn.split("_"); o = i.ops
        if t == "f32": a, b = w.rf(o[1]), w.rf(o[2])
        elif t == "i32": a, b = w.rv(o[1]).view(np.int32), w.rv(o[2]).view(np.int32)
        else: a, b = w.rv(o[1]), w.rv(o[2])
        f = {"lt": lambda: a < b, "le": lambda: a <= b, "gt": lambda: a > b, "ge": lambda: a >= b, "eq": lambda: a == b, "ne": lambda: a != b,
             "neq": lambda: a != b, "nge": lambda: ~(a >= b), "ngt": lambda: ~(a > b), "nle": lambda: ~(a <= b), "nlt": lambda: ~(a < b)}[c]
        w.wmask(o[0], f())
    def x_v_cndmask_b32(self, w, i):
        o = i.ops
        a = w.rv(o[1]); b = w.rv(o[2])
        if o[1].neg: a = a ^ U32(0x80000000)
        if o[2].neg: b = b ^ U32(0x80000000)
        w.wv(o[0], np.where(w.mask(o[3]), b, a))
    def x_v_readfirstlane_b32(self, w, i): w.wsr(i.ops[0], int(w.rv(i.ops[1])[np.argmax(w.em)]))
    def x_v_readlane_b32(self, w, i): w.wsr(i.ops[0], int(w.rv(i.ops[1])[w.rs(i.ops[2]) & 63]))
    def x_v_writelane_b32(self, w, i): w.v[i.ops[0].i][w.rs(i.ops[2]) & 63] = w.rs(i.ops[1])
    def x_v_cvt_pk_bf16_f32(self, w, i):
        o = i.ops; w.wv(o[0], bf16_rne(w.rf(o[1])) | (bf16_rne(w.rf(o[2])) << U32(16)))
    def x_v_cvt_f32_u32(self, w, i): w.wv(i.ops[0], w.rv(i.ops[1]).astype(np.float32))
    def pk(self, w, i, f):
        o = i.ops
        def hi(k):
            x = o[k]
            sel = i.mods.get("op_sel_hi", "[1,1,1]").strip("[]").split(",")
            return w.rf(x, 1) if (x.n == 2 and sel[k - 1] == "1") else w.rf(x, 0)
        lo_ = f(*[w.rf(x, 0) for x in o[1:]]); hi_ = f(*[hi(k) for k in range(1, len(o))])
        w.wv(o[0], lo_.astype(np.float32), 0); w.wv(o[0], hi_.astype(np.float32), 1)
    def x_v_pk_mul_f32(self, w, i): self.pk(w, i, lambda a, b: a * b)
    def x_v_pk_add_f32(self, w, i): self.pk(w, i, lambda a, b: a + b)
    def x_v_pk_fma_f32(self, w, i): self.pk(w, i, lambda a, b, c: a.astype(np.float64) * b + c)
    @staticmethod
    def dot2(a, b, c):
        lo = lambda x: (x << U32(16)).view(np.float32).astype(np.float64)
        hi = lambda x: (x & U32(0xFFFF0000)).view(np.float32).astype(np.float64)
        return (lo(a) * lo(b) + hi(a) * hi(b) + c).astype(np.float32)
    def x_v_dot2_f32_bf16(self, w, i): o = i.ops; w.wv(o[0], self.dot2(w.rv(o[1]), w.rv(o[2]), w.rf(o[3])))
    def x_v_dot2c_f32_bf16(self, w, i): o = i.ops; w.wv(o[0], self.dot2(w.rv(o[1]), w.rv(o[2]), w.rf(o[0])))
    def x_v_permlane32_swap_b32(self, w, i):
        d, s_ = w.v[i.ops[0].i], w.v[i.ops[1].i]
        t = s_[:32].copy(); s_[:32] = d[32:]; d[32:] = t
    def x_v_permlane16_swap_b32(self, w, i):
        d, s_ = w.v[i.ops[0].i], w.v[i.ops[1].i]
        for b in (0, 32):
            t = s_[b:b + 16].copy(); s_[b:b + 16] = d[b + 16:b + 32]; d[b + 16:b + 32] = t
    def x_v_mbcnt_lo_u32_b32(self, w, i):
        assert i.ops[1].val == -1; w.wv(i.ops[0], np.minimum(LANES, 32) + w.rv(i.ops[2]))
    def x_v_mbcnt_hi_u32_b32(self, w, i):
        assert i.ops[1].val == -1; w.wv(i.ops[0], np.maximum(LANES, 32) - U32(32) + w.rv(i.ops[2]))
    def unpack(self, w, o):
        x = w.v[o.i:o.i + 4]
        r = np.empty((64, 8), np.uint32); r[:, 0::2] = (x << U32(16)).T; r[:, 1::2] = (x & U32(0xFFFF0000)).T
        return r.view(np.float32)
    def x_v_mfma_f32_16x16x32_bf16(self, w, i):
        o = i.ops
        if not w.full: self.w(i, "MFMA with partial exec")
        a = self.unpack(w, o[1]).reshape(4, 16, 8).transpose(1, 0, 2).reshape(16, 32)
        b = self.unpack(w, o[2]).reshape(4, 16, 8).transpose(1, 0, 2).reshape(16, 32)
        d = a @ b.T
        d = d.reshape(4, 4, 16).transpose(1, 0, 2).reshape(4, 64)
        if o[3].k == 'v': d = d + w.v[o[3].i:o[3].i + 4].view(np.float32)
        else: assert o[3].val == 0
        w.v[o[0].i:o[0].i + 4] = d.view(np.uint32)

    def ldsidx(self, w, i, addr, nd, align):
        a = addr.astype(np.int64) + int(i.mods.get("offset", "0"), 0)
        act = a[w.em]
        if (act % align).any(): raise EmuError(f"misaligned LDS address {act[act % align != 0][0]}")
        if (act + 4 * nd > w.wg.size).any(): raise EmuError(f"LDS address out of range {act.max()}")
        return np.where(w.em, a, 0)[:, None] // 4 + np.arange(nd)[None, :]
    def chk_read(self, w, i, idx):
        wg = w.wg; ww = wg.w_wave[idx]; we = wg.w_epoch[idx]
        if (ww < 0).any(): self.w(i, "reads never-written LDS")
        other = (ww != w.wid) & (ww >= 0)
        if (other & (we >= wg.epoch)).any(): self.w(i, "LDS RAW race (other wave's write not waited+barriered)")
        own = (ww == w.wid) & (we == PEND)
        if own.any():
            pend_dma = [e[2] for e in w.vmq if e[0] == "dma"]
            if pend_dma and np.isin(idx[own], np.concatenate(pend_dma)).any(): self.w(i, "LDS read of own pending DMA")
        wg.r_epoch[w.wid, idx] = PEND
    def chk_write(self, w, i, idx, dma):
        wg = w.wg
        for k in range(len(wg.waves)):
            re_ = wg.r_epoch[k, idx]
            if k != w.wid and (re_ >= wg.epoch).any(): self.w(i, f"LDS WAR race vs wave {k}")
            if k == w.wid and dma and (re_ == PEND).any(): self.w(i, "DMA over own un-waited ds_read")
        other = (wg.w_wave[idx] != w.wid) & (wg.w_wave[idx] >= 0)
        if (other & (wg.w_epoch[idx] >= wg.epoch)).any(): self.w(i, "LDS WAW race")
        wg.w_wave[idx] = w.wid; wg.w_epoch[idx] = PEND
    def banks(self, w, i, idx, groups, nb):
        extra = 0
        for g in groups:
            g = [x for x in g if w.em[x]]
            if not g: continue
            u = np.unique(idx[g].reshape(-1)); extra += np.bincount(u % nb).max() - 1
        if extra:
            k = (i.line, i.text); self.conf[k] = max(self.conf.get(k, 0), extra)
    def dsread(self, w, i):
        o = i.ops; nd = o[0].n
        idx = self.ldsidx(w, i, w.rv(o[1]), nd, 4 * nd if nd != 3 else 16)
        act = idx[w.em].reshape(-1); self.chk_read(w, i, act)
        if nd == 4: self.banks(w, i, idx, B128_GROUPS, 64)
        elif nd == 2: self.banks(w, i, idx, [range(32), range(32, 64)], 64)
        elif nd == 1: self.banks(w, i, idx, [range(32), range(32, 64)], 32)
        for j in range(nd): w.wv(o[0], w.wg.lds[idx[:, j]], j)
        for r in i.wr: w.pend[r] = -i.line
        w.lgq.append(("dsr", i.wr, act))
    def x_ds_read_b64_tr_b16(self, w, i):
        o = i.ops
        if not w.full: self.w(i, "tr read with partial exec")
        idx = self.ldsidx(w, i, w.rv(o[1]), 2, 8); self.chk_read(w, i, idx.reshape(-1))
        self.banks(w, i, idx, [range(32), range(32, 64)], 64)
        d = np.ascontiguousarray(w.wg.lds[idx]).view(np.uint16).reshape(4, 4, 16)
        t = np.ascontiguousarray(d.transpose(0, 2, 1)).reshape(64, 4).view(np.uint32)
        w.wv(o[0], t[:, 0], 0); w.wv(o[0], t[:, 1], 1)
        for r in i.wr: w.pend[r] = -i.line
        w.lgq.append(("dsr", i.wr, idx.reshape(-1)))
    def dswrite(self, w, i):
        o = i.ops
        if i.mn == "ds_write_b16" or i.mn == "ds_write_b16_d16_hi":
            a = w.rv(o[0]).astype(np.int64) + int(i.mods.get("offset", "0"), 0)
            x = w.rv(o[1]); x = (x >> U32(16)) if "hi" in i.mn else x
            act = (a[w.em] // 4); self.chk_write(w, i, act, False)
            w.wg.lds.view(np.uint16)[a[w.em] // 2] = x[w.em].astype(np.uint16)
            w.lgq.append(("dsw", [], act)); return
        nd = o[1].n
        idx = self.ldsidx(w, i, w.rv(o[0]), nd, 4 * nd if nd != 3 else 16)
        act = idx[w.em].reshape(-1); self.chk_write(w, i, act, False)
        gs = {1: 32, 2: 16, 3: 8, 4: 8}[nd]
        self.banks(w, i, idx, [range(k, k + gs) for k in range(0, 64, gs)], 32)
        for j in range(nd): w.wg.lds[idx[w.em, j]] = w.rv(o[1], j)[w.em]
        w.lgq.append(("dsw", [], act))
    def x_ds_or_b32(self, w, i):
        o = i.ops; idx = self.ldsidx(w, i, w.rv(o[0]), 1, 4)[w.em, 0]
        np.bitwise_or.at(w.wg.lds, idx, w.rv(o[1])[w.em])
        wg = w.wg; wg.w_wave[idx] = w.wid; wg.w_epoch[idx] = PEND
        w.lgq.append(("dsw", [], idx))
    def x_ds_bpermute_b32(self, w, i):
        o = i.ops; w.wv(o[0], w.rv(o[2])[(w.rv(o[1]) >> U32(2)) & U32(63)])
        for r in i.wr: w.pend[r] = -i.line
        w.lgq.append(("x", i.wr, None))

    def baddr(self, w, i, vo, srd, so, nbytes):
        base = int(w.s[srd.i]) | ((int(w.s[srd.i + 1]) & 0xFFFF) << 32); nrec = int(w.s[srd.i + 2])
        assert int(w.s[srd.i + 3]) == 0x20000 and int(w.s[srd.i + 1]) >> 16 == 0
        off = np.zeros(64, np.int64)
        if "offen" in i.mods: off = w.rv(vo).astype(np.int64)
        io = int(i.mods.get("offset", "0"), 0); assert io < 4096
        off = off + io + w.rs(so)
        b, arr, name = self.mem.find(base); self.cur_buf = name
        if base - b + nrec > len(arr): raise EmuError(f"SRD range exceeds buffer {name}")
        al = min(nbytes, 4)
        if (off[w.em] % al).any(): raise EmuError("misaligned global access")
        return arr, base - b, off, nrec, io
    def bload(self, w, i):
        o = i.ops; lds = "lds" in i.mods
        if not w.em.any(): self.w(i, "VMEM with exec=0")
        if i.mn in ("buffer_load_ushort", "buffer_load_short_d16"):
            arr, b0, off, nrec, io = self.baddr(w, i, o[1], o[2], o[3], 2)
            ok = (off + 2 <= nrec); a = np.where(ok, b0 + off, 0)
            x = np.where(ok, arr[a].astype(np.uint32) | (arr[a + 1].astype(np.uint32) << U32(8)), 0)
            w.wv(o[0], x.astype(np.uint32))
        else:
            nd = {"": 1, "x2": 2, "x3": 3, "x4": 4}[i.mn[len("buffer_load_dword"):]]
            vo, srd, so = (o[0], o[1], o[2]) if lds else (o[1], o[2], o[3])
            arr, b0, off, nrec, io = self.baddr(w, i, vo, srd, so, 4 * nd)
            a32 = arr[:len(arr) // 4 * 4].view(np.uint32)
            aa = off[:, None] + 4 * np.arange(nd)[None, :]
            ok = aa + 4 <= nrec
            x = np.where(ok, a32[np.where(ok, (b0 + aa) // 4, 0)], 0).astype(np.uint32)
            if lds:
                la = (int(w.s[M0]) & 0x3FFFC) + io + np.arange(64)[:, None] * 4 * nd + 4 * np.arange(nd)[None, :]
                if (la[w.em] + 4 > w.wg.size).any(): raise EmuError("LDS DMA out of range")
                idx = (la[w.em] // 4).reshape(-1); self.chk_write(w, i, idx, True)
                w.wg.lds[idx] = x[w.em].reshape(-1)
                w.vmq.append(("dma", [], idx));
                if len(w.vmq) > 63: self.w(i, "vmcnt overflow")
                return
            for j in range(nd): w.wv(o[0], x[:, j], j)
        for r in i.wr: w.pend[r] = i.line
        w.vmq.append(("ld", i.wr, None))
        if len(w.vmq) > 63: self.w(i, "vmcnt overflow")
    def bstore(self, w, i):
        o = i.ops
        if not w.em.any(): self.w(i, "VMEM with exec=0")
        if i.mn == "buffer_store_short":
            arr, b0, off, nrec, io = self.baddr(w, i, o[1], o[2], o[3], 2)
            ok = (off + 2 <= nrec) & w.em
            arr[:len(arr) // 2 * 2].view(np.uint16)[(b0 + off[ok]) // 2] = w.rv(o[0])[ok].astype(np.uint16)
        else:
            nd = o[0].n
            arr, b0, off, nrec, io = self.baddr(w, i, o[1], o[2], o[3], 4 * nd)
            a32 = arr[:len(arr) // 4 * 4].view(np.uint32)
            for j in range(nd):
                ok = (off + 4 * j + 4 <= nrec) & w.em
                a32[(b0 + off[ok]) // 4 + j] = w.rv(o[0], j)[ok]
        ok = (off + 4 <= nrec) & w.em; rng = None
        if ok.any():
            rng = (self.cur_buf, int(b0 + off[ok].min()), int(b0 + off[ok].max()), i.line)
            if self.on_store: self.on_store(w, i, self.cur_buf, b0 + off[ok], w.rv(o[0])[ok])
        w.vmq.append(("st", [], rng))
        if len(w.vmq) > 63: self.w(i, "vmcnt overflow")
    def atomic(self, w, i, f):
        o = i.ops; arr, b0, off, nrec, io = self.baddr(w, i, o[1], o[2], o[3], 4)
        a32 = arr[:len(arr) // 4 * 4].view(np.uint32); old = np.zeros(64, np.uint32); x = w.rv(o[0])
        for l in np.nonzero(w.em & (off + 4 <= nrec))[0]:
            k = (b0 + off[l]) // 4; old[l] = a32[k]; a32[k] = f(int(a32[k]), int(x[l])) & 0xFFFFFFFF
        ok = w.em & (off + 4 <= nrec)
        if ok.any() and self.on_store: self.on_store(w, i, self.cur_buf, b0 + off[ok], x[ok])
        if "sc0" in i.mods:
            w.wv(o[0], old)
            for r in i.wr: w.pend[r] = i.line
        w.vmq.append(("at", i.wr, None))
    def x_buffer_atomic_add(self, w, i): self.atomic(w, i, lambda a, b: a + b)
    def x_buffer_atomic_or(self, w, i): self.atomic(w, i, lambda a, b: a | b)

M32 = 0xFFFFFFFF
SOP2 = {
    "s_mov_b32": (lambda a, b, c: a, 0, 0), "s_movk_i32": (lambda a, b, c: a, 0, 0), "s_mov_b64": (lambda a, b, c: a, 1, 0),
    "s_add_u32": (lambda a, b, c: (a + b, int(a + b > M32)), 0, 0), "s_addc_u32": (lambda a, b, c: (a + b + c, int(a + b + c > M32)), 0, 0),
    "s_subb_u32": (lambda a, b, c: (a - b - c, int(b + c > a)), 0, 0),
    "s_sub_u32": (lambda a, b, c: (a - b, int(b > a)), 0, 0), "s_add_i32": (lambda a, b, c: (a + b, 0), 0, 0), "s_sub_i32": (lambda a, b, c: (a - b, 0), 0, 0),
    "s_mul_i32": (lambda a, b, c: a * b, 0, 0), "s_mul_hi_u32": (lambda a, b, c: (a * b) >> 32, 0, 0),
    "s_lshl_b32": (lambda a, b, c: a << (b & 31), 0, 1), "s_lshr_b32": (lambda a, b, c: a >> (b & 31), 0, 1),
    "s_ashr_i32": (lambda a, b, c: sx(a) >> (b & 31), 0, 1),
    "s_lshl_b64": (lambda a, b, c: a << (b & 63), 1, 1), "s_lshr_b64": (lambda a, b, c: a >> (b & 63), 1, 1),
    "s_and_b32": (lambda a, b, c: a & b, 0, 1), "s_or_b32": (lambda a, b, c: a | b, 0, 1), "s_xor_b32": (lambda a, b, c: a ^ b, 0, 1),
    "s_andn2_b32": (lambda a, b, c: a & ~b, 0, 1), "s_not_b32": (lambda a, b, c: ~a, 0, 1),
    "s_and_b64": (lambda a, b, c: a & b, 1, 1), "s_or_b64": (lambda a, b, c: a | b, 1, 1), "s_xor_b64": (lambda a, b, c: a ^ b, 1, 1),
    "s_andn2_b64": (lambda a, b, c: a & ~b, 1, 1), "s_not_b64": (lambda a, b, c: ~a, 1, 1),
    "s_cselect_b32": (lambda a, b, c: a if c else b, 0, 0), "s_cselect_b64": (lambda a, b, c: a if c else b, 1, 0),
    "s_min_u32": (lambda a, b, c: (min(a, b), int(a < b)), 0, 0), "s_max_u32": (lambda a, b, c: (max(a, b), int(a > b)), 0, 0),
    "s_min_i32": (lambda a, b, c: (min(sx(a), sx(b)), int(sx(a) < sx(b))), 0, 0), "s_max_i32": (lambda a, b, c: (max(sx(a), sx(b)), int(sx(a) > sx(b))), 0, 0),
    "s_lshl1_add_u32": (lambda a, b, c: ((a << 1) + b, 0), 0, 0), "s_lshl2_add_u32": (lambda a, b, c: ((a << 2) + b, 0), 0, 0),
    "s_lshl3_add_u32": (lambda a, b, c: ((a << 3) + b, 0), 0, 0), "s_lshl4_add_u32": (lambda a, b, c: ((a << 4) + b, 0), 0, 0),
    "s_bfe_u32": (lambda a, b, c: (a >> (b & 31)) & ((1 << ((b >> 16) & 127)) - 1), 0, 1),
}
SCMP = {
    "s_cmp_eq_u32": lambda a, b: a == b, "s_cmp_lg_u32": lambda a, b: a != b, "s_cmp_lt_u32": lambda a, b: a < b, "s_cmp_le_u32": lambda a, b: a <= b,
    "s_cmp_gt_u32": lambda a, b: a > b, "s_cmp_ge_u32": lambda a, b: a >= b,
    "s_cmp_eq_i32": lambda a, b: a == b, "s_cmp_lg_i32": lambda a, b: a != b, "s_cmp_lt_i32": lambda a, b: sx(a) < sx(b), "s_cmp_le_i32": lambda a, b: sx(a) <= sx(b),
    "s_cmp_gt_i32": lambda a, b: sx(a) > sx(b), "s_cmp_ge_i32": lambda a, b: sx(a) >= sx(b),
    "s_cmp_eq_u64": lambda a, b: a == b, "s_cmp_lg_u64": lambda a, b: a != b,
    "s_bitcmp1_b32": lambda a, b: (a >> (b & 31)) & 1, "s_bitcmp0_b32": lambda a, b: not ((a >> (b & 31)) & 1),
}
_31 = U32(31)
u24 = lambda x: (x & U32(0xFFFFFF)).astype(np.uint64)
VI = {
    "v_mov_b32": lambda a: a, "v_accvgpr_read_b32": lambda a: a, "v_accvgpr_write_b32": lambda a: a, "v_accvgpr_mov_b32": lambda a: a,
    "v_add_u32": lambda a, b: a + b, "v_sub_u32": lambda a, b: a - b, "v_subrev_u32": lambda a, b: b - a,
    "v_lshlrev_b32": lambda a, b: b << (a & _31), "v_lshrrev_b32": lambda a, b: b >> (a & _31),
    "v_ashrrev_i32": lambda a, b: (b.view(np.int32) >> (a & _31).astype(np.int32)).view(np.uint32),
    "v_and_b32": lambda a, b: a & b, "v_or_b32": lambda a, b: a | b, "v_xor_b32": lambda a, b: a ^ b,
    "v_mul_u32_u24": lambda a, b: u24(a) * u24(b), "v_mul_lo_u32": lambda a, b: a * b,
    "v_mul_hi_u32": lambda a, b: (a.astype(np.uint64) * b) >> np.uint64(32),
    "v_mad_u32_u24": lambda a, b, c: u24(a) * u24(b) + c, "v_add3_u32": lambda a, b, c: a + b + c,
    "v_lshl_add_u32": lambda a, b, c: (a << (b & _31)) + c, "v_add_lshl_u32": lambda a, b, c: (a + b) << (c & _31),
    "v_lshl_or_b32": lambda a, b, c: (a << (b & _31)) | c, "v_and_or_b32": lambda a, b, c: (a & b) | c, "v_or3_b32": lambda a, b, c: a | b | c,
    "v_xad_u32": lambda a, b, c: (a ^ b) + c,
    "v_bfe_u32": lambda a, b, c: (a >> (b & _31)) & ((U32(1) << (c & _31)) - U32(1)),
    "v_min_u32": np.minimum, "v_max_u32": np.maximum,
    "v_max_i32": lambda a, b: np.maximum(a.view(np.int32), b.view(np.int32)).view(np.uint32),
    "v_min_i32": lambda a, b: np.minimum(a.view(np.int32), b.view(np.int32)).view(np.uint32),
    "v_perm_b32": None,
}
def _perm(a, b, c):
    src = np.stack([(b >> U32(8 * k)) & U32(255) for k in range(4)] + [(a >> U32(8 * k)) & U32(255) for k in range(4)])
    r = np.zeros(64, np.uint32)
    for k in range(4):
        sel = (c >> U32(8 * k)) & U32(255)
        byte = np.where(sel < 8, src[np.minimum(sel, 7), np.arange(64)], np.where(sel == 12, 0, 255)).astype(np.uint32)
        r |= byte << U32(8 * k)
    return r
VI["v_perm_b32"] = _perm
VF = {
    "v_add_f32": lambda a, b: a + b, "v_sub_f32": lambda a, b: a - b, "v_subrev_f32": lambda a, b: b - a, "v_mul_f32": lambda a, b: a * b,
    "v_max_f32": np.fmax, "v_min_f32": np.fmin, "v_max3_f32": lambda a, b, c: np.fmax(np.fmax(a, b), c),
    "v_fma_f32": lambda a, b, c: a.astype(np.float64) * b + c,
    "v_exp_f32": np.exp2, "v_log_f32": np.log2, "v_rcp_f32": lambda a: np.float32(1) / a, "v_rsq_f32": lambda a: 1 / np.sqrt(a), "v_sqrt_f32": np.sqrt,
}
```

```python
import re
from emu import Emu, M0

_dec = Emu("")
SCC_W = re.compile(r"s_(add|sub|addc|lshl|lshr|ashr|and|or|xor|andn2|not|min|max|cmp|bfe|bitcmp|lshl\d_add|addk)")
SCC_R = re.compile(r"s_(cselect|addc|subb|cbranch_scc)")

def decode(text):
    if text.endswith(":") or text.startswith(";"):
        i = _dec.decode("s_nop 0", 0); i.text = text; i.ws = 0; i.mn = "label"; return i
    if text.startswith("WAITVM"):
        i = _dec.decode("s_waitcnt vmcnt(0)", 0); i.text = text; return i
    i = _dec.decode(text.split(";")[0].strip(), 0); i.text = text
    rd, wr = list(i.rd), list(i.wr)
    i.rd, i.wr = rd, wr
    return i

def need_ws(p, i):
    rd, wr, pw = set(i.rd), set(i.wr), set(p.wr)
    isvalu = i.cls in "VT"; need = 0
    if p.cls == "M":
        if i.cls == "M":
            if pw & set(i.ab): need = 8
            elif pw & set(i.srcc) and p.wr != i.srcc: need = 6
        elif (pw & rd) or (pw & wr): need = 8
        if isvalu and set(p.srcc) & wr: need = max(need, 3)
    elif p.cls in "VT":
        pv = {r for r in pw if r[0] == 'v'}; ps = {r for r in pw if r[0] == 's'}
        if i.cls == "M" and pv & rd: need = 2
        if p.cls == "T" and i.cls == "V" and pv & rd: need = max(need, 1)
        if isvalu and ps & rd: need = max(need, 4 if i.mn in ("v_readlane_b32", "v_writelane_b32") else 2)
        if i.cls == "G" and ps & rd: need = max(need, 5)
        if i.cls == "S" and ps & rd: need = max(need, 2)
        if i.mn in ("v_readfirstlane_b32", "v_readlane_b32") and pv & rd: need = max(need, 1)
        if (i.mn.startswith("v_permlane") or "dpp" in i.mn) and pv & rd: need = max(need, 2)
        if p.mn.startswith("v_dot2") and (isvalu or i.cls == "M") and (pv & (rd | wr)):
            same = i.mn == p.mn
            accop = i.ops[0] if i.mn == "v_dot2c_f32_bf16" else (i.ops[3] if same else None)
            if not (same and not (pv & set(i.ops[1].regs() + i.ops[2].regs())) and pv & set(accop.regs())): need = max(need, 3)
    elif p.cls == "S":
        if ('s', M0) in pw and i.cls == "G" and "lds" in i.mods: need = 1
    elif p.cls == "G":
        if "store_dwordx4" in p.mn or "store_dwordx3" in p.mn:
            if set(p.ops[0].regs()) & wr: need = 2 if isvalu else 1
    return need

def short_ws(out, i):
    d = 0; miss = 0
    for p in reversed(out):
        if d >= 12: break
        miss = max(miss, need_ws(p, i) - d)
        d += p.ws
    return miss

class Node:
    def __init__(self, text, at=None, by=None, rd=(), wr=(), lead=None, tag=None, pin=False, bg=False):
        self.ins = [decode(t) for t in (text if isinstance(text, (list, tuple)) else [text])]
        self.rd = set(rd); self.wr = set(wr)
        for i in self.ins:
            self.rd |= set(i.rd); self.wr |= set(i.wr)
        self.is_m = self.ins[0].cls == "M"
        self.at, self.by, self.lead, self.tag, self.pin = at, by, lead, tag, pin
        self.preds = []; self.succs = []; self.gap = None; self.bg = bg
        for k, i in enumerate(self.ins):
            assert not SCC_R.match(i.mn) or any(SCC_W.match(x.mn) for x in self.ins[:k]), i.text
        for i in self.ins: i.target = tag
        self.isds = any(i.cls == "D" for i in self.ins)

class Region:
    DS_LEAD = 7
    LDS_Q = 16
    VM_Q = 0
    def __init__(self, name=""):
        self.nodes = []; self.nm = 0; self.name = name; self.bg = False
        self.cap = 2; self.vm_cost = 64
        self.cold = False
    def add(self, text, **kw):
        kw.setdefault("bg", self.bg)
        n = Node(text, **kw); n.seq = len(self.nodes); n.pos = self.nm
        if n.is_m: n.gap = self.nm; self.nm += 1
        self.nodes.append(n); return n
    def __call__(self, text, **kw): return self.add(text, **kw)

    def schedule(self, prev=(), verbose=False):
        nodes = self.nodes
        lastw, readers = {}, {}
        for n in nodes:
            ps = {}
            for r in n.rd:
                if r in lastw: ps[lastw[r].seq] = (lastw[r], "raw")
            for r in n.wr:
                if r in lastw: ps.setdefault(lastw[r].seq, (lastw[r], "waw"))
                for q in readers.get(r, ()):
                    if q is not n: ps.setdefault(q.seq, (q, "war"))
            for r in n.rd: readers.setdefault(r, []).append(n)
            for r in n.wr: lastw[r] = n; readers[r] = []
            n.preds = list(ps.values())
            for p, k in n.preds: p.succs.append((n, k))
        NM = self.nm
        for n in reversed(nodes):
            if n.is_m: n.dl = n.gap - 1; n.hard = n.gap - 1; continue
            dl = NM - 1 if n.by is None else n.by; hard = NM - 1
            for q, k in n.succs:
                lead = 0
                if k == "raw": lead = n.lead if n.lead is not None else (self.DS_LEAD if n.isds else 1)
                dl = min(dl, q.dl - lead); hard = min(hard, q.hard)
            n.dl, n.hard = dl, hard
        out = list(prev); n0 = len(out)
        todo = [n for n in nodes if not n.is_m]
        ms = [n for n in nodes if n.is_m]
        done = set(); over = 0
        def ready(n): return all(p.seq in done for p, k in n.preds)
        def cost(n, a_free):
            c = 0
            for k, i in enumerate(n.ins):
                if i.cls == "S":
                    if a_free and k == 0: continue
                    c += i.ws
                else: c += 2 if i.cls in "TG" else 1
            return c
        busy = {"D": 0, "G": 0}
        def res_cost(i): return (8 if "b64" in i.mn or "b32" in i.mn else 16) if i.cls == "D" else self.vm_cost
        def res_ok(n, g):
            for i in n.ins:
                if i.cls in "DG" and busy[i.cls] - 16 * g > (self.LDS_Q if i.cls == "D" else self.VM_Q): return False
            return True
        def emit(n, g, force=False):
            for i in n.ins:
                if i.cls in "DG": busy[i.cls] = max(busy[i.cls], 16 * g) + res_cost(i)
                m = short_ws(out, i)
                if m > 0: out.append(decode(f"s_nop {m-1}"))
                out.append(i)
            n.gap = g; done.add(n.seq); todo.remove(n)
        def fill(g):
            nonlocal over
            a_free, cap = True, self.cap
            while True:
                cands = [n for n in todo if (n.at is None or n.at <= g) and ready(n)]
                cands.sort(key=lambda n: (n.bg, n.dl, n.seq))
                pick = None
                if a_free:
                    for n in cands:
                        if n.ins[0].cls == "S" and cost(n, True) <= cap and short_ws(out, n.ins[0]) == 0:
                            if cost(n, True) == 0 or n is cands[0] or n.dl <= g + 1: pick = n; break
                if pick is None:
                    ok = []
                    for n in cands:
                        if cost(n, a_free) > cap or short_ws(out, n.ins[0]) > 0: continue
                        if n.ins[0].cls == "S" and n.dl > g: continue
                        if n.ins[0].cls == "D" and out[-1].cls == "T": continue
                        if not res_ok(n, g): continue
                        ok.append(n)
                    if ok:
                        pick = ok[0]
                        if cap == 2 and cost(pick, a_free) == 1 and pick.dl > g:
                            after = max(busy["D"], 16 * g) + res_cost(pick.ins[0]) - 16 * g if pick.isds else busy["D"] - 16 * g
                            mates = [n for n in ok[1:] + [q for q, k in pick.succs if not q.is_m and q in todo and all(p.seq in done or p is pick for p, _ in q.preds)
                                                          and (q.at is None or q.at <= g) and k != "raw"]
                                     if cost(n, False) == 1 and n.ins[0].cls != "S" and (not n.isds or after <= self.LDS_Q)]
                            twos = [n for n in ok if cost(n, a_free) == 2]
                            if not mates and twos: pick = twos[0]
                if pick is None: break
                cap -= cost(pick, a_free); a_free = False; emit(pick, g)
            while True:
                f = [n for n in todo if n.hard <= g or (n.pin and n.at <= g)]
                f = [n for n in f if ready(n)]
                if not f: break
                f.sort(key=lambda n: (n.dl, n.seq)); over += cost(f[0], False)
                if verbose: print(f"  [{self.name}] forced at gap {g}: {f[0].ins[0].text}")
                emit(f[0], g)
        while True:
            f = [n for n in todo if (n.hard < 0 or (self.cold and n.isds and n.dl < 0)) and ready(n)]
            if not f: break
            emit(min(f, key=lambda n: (n.hard, n.seq)), -1)
        busy["D"] = 0
        for g, m in enumerate(ms):
            assert ready(m), (self.name, g, m.ins[0].text, [p.ins[0].text for p, k in m.preds if p.seq not in done])
            k = short_ws(out, m.ins[0])
            if k > 0:
                out.append(decode(f"s_nop {k-1}")); over += k
                if verbose: print(f"  [{self.name}] nop {k} before mfma {g}")
            out.append(m.ins[0]); done.add(m.seq)
            fill(g)
        assert not todo, (self.name, [n.ins[0].text for n in todo])
        if verbose:
            late = [(n.ins[0].text, n.gap - n.dl) for n in nodes if not n.is_m and n.gap > n.dl + 2]
            print(f"[{self.name}] mfma {NM} overflow slots {over} late {len(late)} {late[:6]}")
        return out[n0:]

def plain(texts, prev=()):
    out = list(prev); n0 = len(out)
    for t in texts:
        i = decode(t) if isinstance(t, str) else t
        i.target = getattr(i, "target", None)
        m = short_ws(out, i)
        if m > 0: out.append(decode(f"s_nop {m-1}"))
        out.append(i)
    return out[n0:]

def tagged(text, tag):
    i = decode(text); i.target = tag; return i

def fix_waits(ins, carry=(), age=5):
    out = []
    q = [(set(c), -100) for c in carry]
    nm = 0; last_m = None
    for i in ins:
        if i.text.startswith("WAITVM") and i.text.endswith("+lgkm"): q = []
        if i.mn == "s_waitcnt" and "lgkmcnt" in i.mods and not i.text.startswith("WAITVM"):
            q = q[len(q) - i.mods["lgkmcnt"]:] if i.mods["lgkmcnt"] < len(q) else q
            if i.mods["lgkmcnt"] == 0: q = []
        touch = set(i.rd) | (set(i.wr) if i.cls != "D" else set())
        k = max((n for n, e in enumerate(q) if e[0] & touch), default=-1)
        if len(q) >= 15 and i.cls == "D" and k < 0: k = 0
        if k >= 0:
            pos = len(out); nafter = 0
            if last_m is not None and (last_m + 1 >= len(out) or out[last_m + 1].cls != "S"):
                later = sum(1 for x in out[last_m + 1:] if x.cls == "D")
                if k < len(q) - later: pos = last_m + 1; nafter = later
            while k + 1 < len(q) - nafter and q[k + 1][1] <= nm - age: k += 1
            cnt = len(q) - nafter - (k + 1)
            merged = False
            if pos == len(out) and last_m is not None and last_m + 1 < len(out):
                x = out[last_m + 1]
                later = sum(1 for y in out[last_m + 1:] if y.cls == "D")
                if x.mn == "s_waitcnt" and not x.text.startswith("WAITVM") and k < len(q) - later:
                    c2 = len(q) - later - (k + 1)
                    vm = f"vmcnt({x.mods['vmcnt']}) " if "vmcnt" in x.mods else ""
                    out[last_m + 1] = decode(f"s_waitcnt {vm}lgkmcnt({min(c2, x.mods.get('lgkmcnt', 15))})"); merged = True
            if not merged: out.insert(pos, decode(f"s_waitcnt lgkmcnt({cnt})"))
            q = q[k + 1:]
        out.append(i)
        if i.cls == "D": q.append((set(i.wr), nm))
        if i.cls == "M": nm += 1; last_m = len(out) - 1
    for n, i in enumerate(out):
        if i.text.startswith("WAITVM"):
            tags = i.text.split()[1:]; cnt = 0; found = False
            for p in reversed(out[:n]):
                if p.cls == "G":
                    if getattr(p, "target", None) in tags: found = True; break
                    cnt += 1
            if tags[0].startswith("pre"): cnt += int(tags[0][3:]); found = True
            assert found, i.text
            assert not any(p.cls == "G" and getattr(p, "target", None) in tags for p in out[n:]), i.text
            assert cnt < 64
            out[n] = decode(f"s_waitcnt vmcnt({cnt})" + (" lgkmcnt(0)" if "+lgkm" in tags else ""))
    return out, [sorted(e[0]) for e in q]

def texts(ins): return [i.text for i in ins]
```

```python
import sys, time
import numpy as np
import gen, refnp as R
from emu import *
def main(h=5, scale_q=1.0, js=range(8)):
    txt = gen.generate()
    e = Emu(txt); inp = R.make_inputs(0, scale_q)
    ptrs = [e.mem.add(inp[k], k) for k in inp]
    out = np.full(2048 * 576, 0x7FC0, np.uint16); dbg = np.zeros(64, np.uint32); ws = np.full(0x5000000 // 2, 0x7FC1, np.uint16)
    po, pd, pw = e.mem.add(out, "out"), e.mem.add(dbg, "dbg"), e.mem.add(ws, "ws")
    wsb = e.mem.find(pw)[1].view(np.uint16); db = e.mem.find(pd)[1].view(np.uint32)
    wg = [(h >> 2) + 8 * (h & 3) + 32 * j for j in js]
    mine = np.zeros(4672, bool); mine[128 * h:128 * h + 128] = True; mine[4096 + 18 * h:4096 + 18 * h + 18] = True
    rng = np.random.default_rng(1); X0 = R.rb(rng.standard_normal((2048, 4672)).astype(np.float32)); X0[:, mine] = np.nan
    C = slice(gen.WS_CTX // 2, (gen.WS_CTX + gen.CTX_SZ) // 2); T = slice(gen.WS_WT // 2, (gen.WS_WT + gen.WT_SZ) // 2)
    wsb[C] = R.ctx_pack(X0)
    wr = R.wt_pack(inp).reshape(152, 36, 512); wt0 = wr.copy(); wt0[4 * h:4 * h + 4] = 0x7FC1
    for j in js:
        b = 8 * j + (h & 7)
        if b < 36: wt0[128 + 6 * (h >> 3) + b // 6, 6 * (b % 6):6 * (b % 6) + 6] = 0x7FC1
    wsb[T] = wt0.reshape(-1); T_ = T
    WA = slice(gen.WS_WA // 2, (gen.WS_WA + 32 * gen.WA_SZ) // 2); war = R.wa_pack(inp); wa0 = war.copy()
    for b in wg:
        if b < 192: wa0[:, 3 * b:3 * b + 3] = 0x7FC1
    wsb[WA] = wa0.reshape(-1)
    cv = wsb[C].reshape(128, 152 * 4, 128); cv[:, 512 + 3 * h + 2] = 0x7FC1
    db[::2] = 8; db[2 * h] = 0
    wsb[gen.WS_FL // 2:(gen.WS_FL + gen.FL_SZ) // 2].view(np.uint32)[:] = 3
    xb = wsb[gen.WS_X // 2:(gen.WS_X + 256 * gen.X_WG) // 2].reshape(256, 3, 4, 3, 64, 8)
    for j in js: xb[32 * j + h] = R.bf16(rng.standard_normal((3, 4, 3, 64, 8)))
    def region(off):
        for nm, lo in (("x", gen.WS_X), ("fl", gen.WS_FL), ("wa", gen.WS_WA), ("wt", gen.WS_WT), ("ctx", gen.WS_CTX), ("kv", 0)):
            if off >= lo:
                if nm == "ctx" and ((off - lo) % gen.CTX_RB) >= 128 * 1024: return "oa"
                return nm
    def hook(w, i, buf, offs, vals):
        g = w.wg; g.closed = getattr(g, "closed", set()); g.nsig = getattr(g, "nsig", 0); cover = None; waves = g.waves
        if buf == "ws" and "sc1" not in i.mods: e.w(i, "ws store without sc1")
        if buf == "dbg": g.nsig += 1; cover = ["wa", "fl"] if g.nsig == 1 else ["wt"]; waves = waves if g.nsig == 1 else [w]
        elif buf == "ws" and region(offs[0]) == "fl":
            if vals[0] == 0: return
            if offs[0] >= gen.WS_FL + 32768: cover = ["wt"] if vals[0] == 1 else ["x"]; waves = [w]
            else: cover = {1: ["kv"], 2: ["ctx"], 3: ["oa"]}[int(vals[0])]
        elif buf == "ws":
            if (region(offs[0]), w.wid) in g.closed: e.w(i, "store after its signal")
            return
        else: return
        for v in waves:
            for c in cover: g.closed.add((c, v.wid))
            for q in v.vmq:
                if q[0] == "st" and q[2] and q[2][0] == "ws" and region(q[2][1]) in cover: e.w(i, f"SIGNAL before store of line {q[2][3]} (wave {v.wid}) was waited for")
        sigs.append((g.id, w.wid, cover))
    sigs = []; e.on_store = hook
    t = time.time(); wgs = e.launch(gen.NAME + "_kernel", wg + [256], 163840, ptrs + [po, pd, pw]); print("emu time", time.time() - t)
    for g in (wgs[0], wgs[7]): print("wg", g.id, "cycles", g.waves[0].t, g.waves[0].marks, "ninst", g.waves[0].ninst)
    print("code probes (line: reach)", e.code_reach)
    print("signals of first wg:", [c for g_, w_, c in sigs if g_ == wg[0]])
    K, V = R.kv_unpack(wsb[h * gen.HEADSZ // 2:(h + 1) * gen.HEADSZ // 2]); Kr, Vr = R.kv_ref(inp, h)
    print("K rel", R.rel(K, Kr), "V rel", R.rel(V, Vr))
    X = R.ctx_unpack(wsb[C])
    cr = R.ctx_ref(inp, h); c = X[:, 128 * h:128 * h + 128]
    print("ctx rel", R.rel(c, cr), [round(R.rel(c[128 * t:128 * t + 128], cr[128 * t:128 * t + 128]), 4) for t in range(16)])
    print("oA rel", R.rel(X[:, 4096 + 18 * h:4096 + 18 * h + 18], R.oa_ref(inp, h)))
    print("untouched elsewhere:", bool((X[:, ~mine] == X0[:, ~mine]).all()), "WT ok", bool((wsb[T] == wr.reshape(-1)).all()), "dbg", db[2 * h], "WA ok", bool((wsb[WA] == war.reshape(-1)).all()))
    o = R.f32(e.mem.find(po)[1].view(np.uint16)).reshape(2048, 576)
    sg = h >> 3; sl = np.zeros(4672, bool); sl[1024 * sg:1024 * sg + 1024] = True; sl[4096 + 144 * sg:4096 + 144 * sg + 144] = True
    part = X[:, sl] @ np.concatenate([R.f32(inp["B_w_o"]), R.f32(inp["A_wo"])], 0)[sl]
    ref = np.full((2048, 576), np.nan, np.float32); es = []
    e8 = np.arange(8)
    for j in js:
        T = 15 - j if h & 4 else j
        for w in range(4):
            for cb in range(9):
                rows = (128 * T + 32 * w + R.L15[:, None] + 16 * (e8 >> 2)[None]); cols = 16 * (8 * (cb >> 1) + 2 * (h & 3) + (cb & 1) if cb < 8 else 32 + (h & 3)) + 4 * R.G[:, None] + (e8 & 3)[None]
                own = cb >> 1 if cb < 8 else w; f = cb & 1 if cb < 8 else 2
                if own == sg: ref[rows, cols] = part[rows, cols] + R.f32(xb[32 * j + h, :, w, f]).sum(0)
                else:
                    v = (own - sg) & 3
                    es.append(R.rel(R.f32(xb[32 * j + ((h + 8 * v) & 31), 3 - v, w, f]), part[rows, cols]))
    m = ~np.isnan(o); print("out written", m.sum(), "same set", (m == ~np.isnan(ref)).all(), "rel", R.rel(o[m], ref[m]), "sent max rel", max(es), len(es),
                            "x written", (xb != 0x7FC1).any(-1).any(-1).sum())
    cs = sorted(e.conf.items(), key=lambda x: -x[1]); print("bank conflicts:", len(cs), [(k[1][:28], v) for k, v in cs[:40:4]])
    return (not e.warn and R.rel(K, Kr) < 1e-3 and R.rel(V, Vr) < 1e-3 and R.rel(c, cr) < 3e-3 and R.rel(o[m], ref[m]) < 3e-3 and max(es) < 3e-3 and (m == ~np.isnan(ref)).all()
            and R.rel(X[:, 4096 + 18 * h:4096 + 18 * h + 18], R.oa_ref(inp, h)) < 4e-3 and (wsb[T_] == wr.reshape(-1)).all() and (wsb[WA] == war.reshape(-1)).all())
if __name__ == "__main__":
    main(h=int(sys.argv[1]) if len(sys.argv) > 1 else 5, scale_q=float(sys.argv[2]) if len(sys.argv) > 2 else 1.0)
```

```python
import re, sys
import numpy as np

U32 = np.uint32
LANES = np.arange(64, dtype=np.uint32)
VCC, M0, EXEC = 106, 124, 126
np.seterr(all="ignore")

class EmuError(Exception): pass

def f2u(x): return np.asarray(x, dtype=np.float32).view(np.uint32)
def u2f(x): return np.asarray(x, dtype=np.uint32).view(np.float32)
def bf16_rne(f):
    u = f2u(f).astype(np.uint64)
    r = ((u + 0x7FFF + ((u >> 16) & 1)) >> 16).astype(np.uint32) & 0xFFFF
    nan = np.isnan(np.asarray(f, dtype=np.float32))
    return np.where(nan, 0x7FC0, r).astype(np.uint32)

INLINE_F = {"0.5": 0.5, "-0.5": -0.5, "1.0": 1.0, "-1.0": -1.0, "2.0": 2.0, "-2.0": -2.0, "4.0": 4.0, "-4.0": -4.0}

class Op:
    __slots__ = ("k", "i", "n", "val", "neg", "abs")
    def __init__(self, k, i=0, n=1, val=0): self.k, self.i, self.n, self.val, self.neg, self.abs = k, i, n, val, False, False
    def regs(self):
        if self.k == 'v': return [('v', self.i + j) for j in range(self.n)]
        if self.k == 's': return [('s', self.i + j) for j in range(self.n)]
        return []

def parse_op(t, accum=256):
    t = t.strip()
    neg = ab = False
    if t in INLINE_F: return Op('c', val=int(f2u(INLINE_F[t])))
    if t.startswith("-") and not re.match(r"-\d|-0x", t): neg = True; t = t[1:]
    m = re.match(r"abs\((.*)\)$", t) or re.match(r"\|(.*)\|$", t)
    if m: ab = True; t = m.group(1)
    m = re.match(r"([vas])(\d+)$", t)
    if m: k, i, n = m.group(1), int(m.group(2)), 1
    else:
        m = re.match(r"([vas])\[(\d+):(\d+)\]$", t)
        if m: k, i, n = m.group(1), int(m.group(2)), int(m.group(3)) - int(m.group(2)) + 1
        else:
            named = {"vcc": (VCC, 2), "vcc_lo": (VCC, 1), "vcc_hi": (VCC + 1, 1), "exec": (EXEC, 2), "exec_lo": (EXEC, 1),
                     "exec_hi": (EXEC + 1, 1), "m0": (M0, 1)}
            if t in named: return Op('s', *named[t])
            if t == "off": return Op('off')
            try: return Op('c', val=int(t, 0))
            except ValueError: return Op('label', val=t)
    if k == 'a': k, i = 'v', i + accum
    else:
        if k == 'v': assert i + n <= accum, t
    o = Op(k, i, n); o.neg, o.abs = neg, ab
    return o

class Inst:
    __slots__ = ("mn", "ops", "mods", "line", "text", "cls", "rd", "wr", "fn", "target", "ws", "srcc", "ab")

def split_ops(s):
    out, d, cur = [], 0, ""
    for ch in s:
        if ch in "[(": d += 1
        if ch in "])": d -= 1
        if ch == "," and d == 0: out.append(cur); cur = ""
        else: cur += ch
    if cur.strip(): out.append(cur)
    return out

TRANS = ("v_exp_f32", "v_log_f32", "v_rcp_f32", "v_rsq_f32", "v_sqrt_f32")

class Mem:
    def __init__(self): self.bufs = []; self.next = 0x7000_0000_0000
    def add(self, arr, name):
        a = np.ascontiguousarray(arr).view(np.uint8).reshape(-1)
        base = self.next; self.next += (len(a) + (1 << 22)) // (1 << 21) * (1 << 21)
        self.bufs.append((base, a, name)); return base
    def find(self, addr):
        for b, a, n in self.bufs:
            if b <= addr < b + len(a) + 1: return b, a, n
        raise EmuError(f"address {addr:#x} not in any buffer")

class WG:
    def __init__(self, lds_bytes, nw):
        self.lds = np.zeros(163840 // 4, np.uint32); self.lds[:] = 0x7FC1DEAD
        self.size = lds_bytes
        n = 163840 // 4
        self.w_wave = np.full(n, -1, np.int8)
        self.w_epoch = np.full(n, -1, np.int32)
        self.r_epoch = np.full((nw, n), -1, np.int32)
        self.epoch = 0; self.waves = []; self.arrived = 0

PEND = 1 << 30

class Wave:
    def __init__(self, emu, wg, wid, wgid, pc):
        self.e, self.wg, self.wid, self.pc = emu, wg, wid, pc
        self.s = np.zeros(128, np.uint64); self.sw = np.zeros(128, bool)
        self.v = np.full((512, 64), 0x7FC0BEEF, np.uint32); self.vw = np.zeros(512, bool)
        self.scc = 0; self.done = False; self.at_bar = False
        self.s[0] = emu.kernarg & 0xFFFFFFFF; self.s[1] = emu.kernarg >> 32; self.s[2] = wgid
        self.sw[[0, 1, 2, EXEC, EXEC + 1]] = True
        self.s[EXEC] = self.s[EXEC + 1] = 0xFFFFFFFF
        self.v[0] = LANES + 64 * wid; self.vw[0] = True
        self.em = np.ones(64, bool); self.full = True
        self.vmq = []; self.lgq = []; self.pend = {}
        self.hist = []; self.slot = 0
        self.t = 0; self.mfma_free = 0; self.vec_ok = 0; self.marks = []; self.ninst = 0; self.last_trans = False
    def upd_exec(self):
        x = int(self.s[EXEC]) | (int(self.s[EXEC + 1]) << 32)
        self.em = ((x >> np.arange(64, dtype=np.uint64).astype(object)) & 1).astype(bool); self.full = x == (1 << 64) - 1
    def rs(self, o):
        if o.k == 'c': return o.val & 0xFFFFFFFF
        return int(self.s[o.i])
    def rs64(self, o):
        if o.k == 'c': return o.val & 0xFFFFFFFFFFFFFFFF
        return int(self.s[o.i]) | (int(self.s[o.i + 1]) << 32)
    def wsr(self, o, x):
        self.s[o.i] = x & 0xFFFFFFFF
        if o.i in (EXEC, EXEC + 1): self.upd_exec()
    def ws64(self, o, x):
        self.s[o.i] = x & 0xFFFFFFFF; self.s[o.i + 1] = (x >> 32) & 0xFFFFFFFF
        if o.i == EXEC: self.upd_exec()
    def rv(self, o, j=0):
        if o.k == 'v': return self.v[o.i + j]
        if o.k == 's': return np.full(64, int(self.s[o.i + j]), np.uint32)
        return np.full(64, o.val & 0xFFFFFFFF, np.uint32)
    def rf(self, o, j=0):
        x = self.rv(o, j)
        if o.k == 'c' and -16 <= o.val <= 64 and o.val != 0: raise EmuError("int inline const used as float")
        if o.abs: x = x & U32(0x7FFFFFFF)
        if o.neg: x = x ^ U32(0x80000000)
        return x.view(np.float32)
    def wv(self, o, x, j=0):
        x = np.asarray(x)
        if x.dtype == np.float32: x = x.view(np.uint32)
        if self.full: self.v[o.i + j] = x
        else: self.v[o.i + j] = np.where(self.em, x, self.v[o.i + j])
    def mask(self, o):
        x = self.rs64(o)
        return np.array([(x >> i) & 1 for i in range(64)], bool)
    def wmask(self, o, m):
        m = m & self.em
        self.ws64(o, int(np.packbits(m[::-1]).view(">u8")[0]))

def sx(x): x = int(x) & 0xFFFFFFFF; return x - (1 << 32) if x >> 31 else x

B128_GROUPS = [list(range(0, 4)) + list(range(12, 16)) + list(range(20, 28)), list(range(4, 12)) + list(range(16, 20)) + list(range(28, 32))]
B128_GROUPS += [[x + 32 for x in g] for g in B128_GROUPS]

class Emu:
    def __init__(self, text, accum=256):
        self.accum = accum
        self.code = []; self.labels = {}; self.mem = Mem(); self.warn = {}; self.conf = {}
        self.strict_uninit = True; self.code_reach = {}
        self.on_store = None
        in_text = True
        for ln, raw in enumerate(text.split("\n"), 1):
            l = raw.split(";")[0].strip()
            mk = re.search(r";\s*@mark\s+(\S+)", raw)
            if mk and not l:
                i = Inst(); i.mn = "@mark"; i.text = mk.group(1); i.line = ln; i.cls = "X"; i.rd = i.wr = []; i.ws = 0; i.fn = None
                self.code.append(i); continue
            if not l: continue
            if l.startswith(".section"): in_text = False
            if l.startswith(".text"): in_text = True
            if l.startswith(".") and not l.endswith(":"): continue
            if not in_text: continue
            if l.endswith(":"): self.labels[l[:-1]] = len(self.code); continue
            self.code.append(self.decode(l, ln))
        for i in self.code:
            if i.mn.startswith("s_cbranch") or i.mn == "s_branch": i.target = self.labels[i.ops[0].val]
    def w(self, inst, msg):
        k = (inst.line, msg)
        if k not in self.warn:
            self.warn[k] = 0; print(f"[emu] line {inst.line}: {inst.text}: {msg}")
        self.warn[k] += 1

    def decode(self, l, ln):
        p = l.split(None, 1); mn = re.sub(r"_e(32|64)$", "", p[0]); rest = p[1] if len(p) > 1 else ""
        i = Inst(); i.mn, i.line, i.text = mn, ln, l; i.mods = {}; i.ws = 1; i.srcc = []; i.ab = []
        if mn == "s_waitcnt":
            i.ops = []; i.mods = {k: int(x) for k, x in re.findall(r"(\w+)\((\d+)\)", rest)}
        elif mn in ("buffer_inv", "buffer_wbl2"):
            i.ops = []
        else:
            parts = split_ops(rest)
            if parts:
                last = parts[-1].strip().split()
                parts[-1] = last[0]
                for m in last[1:]:
                    if ":" in m: k, x = m.split(":", 1); i.mods[k] = x
                    else: i.mods[m] = True
            i.ops = [parse_op(x, self.accum) for x in parts] if mn != "s_getreg_b32" else [parse_op(parts[0])]
        o = i.ops
        R = lambda *xs: [r for x in xs for r in x.regs()]
        if mn.startswith("v_smfmac"):
            i.cls = "M"; i.wr = R(o[0]); i.rd = R(*o); i.srcc = R(o[0]); i.ab = R(o[1], o[2], o[3])
        elif mn.startswith("v_mfma"):
            i.cls = "M"; i.wr = R(o[0]); i.rd = R(o[1], o[2], o[3]); i.srcc = R(o[3]); i.ab = R(o[1], o[2])
        elif mn.startswith("v_"):
            i.cls = "T" if mn in TRANS else "V"
            if mn.startswith("v_permlane") and "swap" in mn: i.wr = R(o[0], o[1]); i.rd = R(o[0], o[1])
            elif mn in ("v_fmac_f32", "v_dot2c_f32_bf16"): i.wr = R(o[0]); i.rd = R(*o)
            elif mn in ("v_add_co_u32",): i.wr = R(o[0], o[1]); i.rd = R(*o[2:])
            elif mn in ("v_addc_co_u32",): i.wr = R(o[0], o[1]); i.rd = R(*o[2:])
            elif mn == "v_nop": i.wr = i.rd = []
            else: i.wr = R(o[0]); i.rd = R(*o[1:])
        elif mn.startswith("ds_"):
            i.cls = "D"
            if mn.startswith("ds_read") or mn.startswith("ds_bperm"): i.wr = R(o[0]); i.rd = R(*o[1:])
            else: i.wr = []; i.rd = R(*o)
        elif mn.startswith("buffer_") or mn.startswith("global_"):
            i.cls = "G"
            if mn in ("buffer_inv", "buffer_wbl2"): i.wr = i.rd = []
            elif mn.startswith("buffer_load") and "lds" in i.mods: i.wr = []; i.rd = R(*o) + [('s', M0)]
            elif mn.startswith("buffer_load") or mn.startswith("global_load"): i.wr = R(o[0]); i.rd = R(*o[1:])
            elif mn.startswith("buffer_atomic") and "sc0" in i.mods: i.wr = R(o[0]); i.rd = R(*o)
            else: i.wr = []; i.rd = R(*o)
        else:
            i.cls = "S"
            if mn.startswith("s_cmp") or mn.startswith("s_bitcmp"): i.wr = []; i.rd = R(*o)
            elif mn.startswith("s_cbranch_vcc"): i.wr = []; i.rd = [('s', VCC), ('s', VCC + 1)]
            elif mn in ("s_waitcnt", "s_barrier", "s_nop", "s_endpgm", "s_sleep", "s_setprio", "s_branch") or mn.startswith("s_cbranch"):
                i.wr = i.rd = []
            elif mn in ("s_addk_i32", "s_mulk_i32"): i.wr = R(o[0]); i.rd = R(o[0])
            else: i.wr = R(o[0]); i.rd = R(*o[1:])
            if mn == "s_nop": i.ws = o[0].val + 1
        i.fn = getattr(self, "x_" + mn, None)
        if i.fn is None:
            if mn in SOP2: i.fn = self.sop2
            elif mn in SCMP: i.fn = self.scmp
            elif mn in VI: i.fn = self.vint
            elif mn in VF: i.fn = self.vflt
            elif mn.startswith("v_cmp_"): i.fn = self.vcmp
            elif mn.startswith("s_load_dword"): i.fn = self.sload
            elif mn.startswith("ds_read_b") and "tr" not in mn: i.fn = self.dsread
            elif mn.startswith("ds_write_b"): i.fn = self.dswrite
            elif mn.startswith("buffer_load"): i.fn = self.bload
            elif mn.startswith("buffer_store"): i.fn = self.bstore
            else: raise EmuError(f"line {ln}: unsupported instruction {l}")
        return i

    def hazards(self, w, i):
        rd, wr = set(i.rd), set(i.wr)
        isvalu = i.cls in "VT"
        for (slot, p) in w.hist:
            d = w.slot - slot - p.ws
            need = 0; pw = set(p.wr)
            if p.cls == "M":
                four = "mfma_f32_16x16" in p.mn
                if i.cls == "M":
                    if pw & set(i.ab): need = 8 if four else 12
                    elif pw & set(i.srcc) and (p.wr != i.srcc or p.mn != i.mn): need = 6 if four else 10
                    elif pw & wr and not (pw & set(i.srcc)): need = 0
                elif (pw & rd) or (pw & wr): need = 8 if four else 12
                if isvalu and set(p.srcc) & wr: need = max(need, 3 if four else 7)
            elif p.cls in "VT":
                pv = {r for r in pw if r[0] == 'v'}; ps = {r for r in pw if r[0] == 's'}
                if i.cls == "M" and pv & rd: need = 2
                if p.cls == "T" and i.cls == "V" and pv & rd: need = max(need, 1)
                if isvalu and ps & rd: need = max(need, 4 if i.mn in ("v_readlane_b32", "v_writelane_b32") else 2)
                if i.cls == "G" and ps & rd: need = max(need, 5)
                if i.mn in ("v_readfirstlane_b32", "v_readlane_b32") and pv & rd: need = max(need, 1)
                if (i.mn.startswith("v_permlane") or "dpp" in i.mn) and pv & rd: need = max(need, 2)
                if p.mn.startswith("v_dot2") and (isvalu or i.cls == "M") and (pv & (rd | wr)):
                    same = i.mn == p.mn
                    accop = i.ops[0] if i.mn == "v_dot2c_f32_bf16" else (i.ops[3] if same else None)
                    if not (same and not (pv & set(i.ops[1].regs() + i.ops[2].regs())) and pv & set(accop.regs())): need = max(need, 3)
                if ("sdwa" in p.mn or "op_sel" in p.mods) and isvalu and pv & (rd | wr) and not p.mn.startswith("v_pk"): need = max(need, 1)
            elif p.cls == "S":
                if ('s', M0) in pw and i.cls == "G" and "lds" in i.mods: need = 1
            elif p.cls == "G":
                if ("store_dwordx4" in p.mn or "store_dwordx3" in p.mn):
                    data = set(p.ops[0].regs() if p.mn.startswith("buffer") else p.ops[1].regs())
                    if data & wr: need = 2 if isvalu else 1
            if d < need: self.w(i, f"HAZARD: needs {need} wait states after line {p.line} ({p.text}), has {d}")
        w.hist.append((w.slot, i)); w.slot += i.ws
        while w.hist and w.slot - w.hist[0][0] > 24: w.hist.pop(0)

    def timing(self, w, i):
        t = w.t
        if i.cls == "M":
            t = max(t, w.mfma_free, w.vec_ok)
            w.mfma_free = t + (16 if "16x16" in i.mn else 32); w.vec_ok = t + 8; w.t = t + 4
        elif i.cls == "S": w.t = t + 4 * i.ws
        else:
            t = max(t, w.vec_ok)
            if i.cls == "D" and w.last_trans: t += 8
            w.t = t + (8 if i.cls in "TG" else 4)
        w.last_trans = i.cls == "T"

    def launch(self, kernel, wgids, lds, ptrs, nw=4, max_inst=2_000_000):
        ka = np.array(ptrs, dtype=np.uint64); self.kernarg = self.mem.add(ka, "kernarg")
        wgs = []
        for g in wgids:
            wg = WG(lds, nw); wg.id = g
            wg.waves = [Wave(self, wg, k, g, self.labels[kernel]) for k in range(nw)]; wgs.append(wg)
        code = self.code
        while True:
            alive = False; progress = False
            for wg in wgs:
                for w in wg.waves:
                    if w.done: continue
                    alive = True
                    if w.at_bar: continue
                    progress = True
                    while True:
                        i = code[w.pc]; w.pc += 1
                        if i.cls == "X": w.marks.append((i.text, w.t)); continue
                        w.ninst += 1
                        if w.ninst > max_inst: raise EmuError(f"instruction limit at line {i.line}")
                        for r in i.rd:
                            if r in w.pend: self.w(i, f"reads {r} with load pending (line {w.pend[r]})")
                            if not (w.vw if r[0] == 'v' else w.sw)[r[1]] and self.strict_uninit: self.w(i, f"reads unwritten {r}")
                        for r in i.wr:
                            if r in w.pend and not (i.cls == "D" and w.pend[r] < 0): self.w(i, f"writes {r} with load pending (line {w.pend[r]})")
                            (w.vw if r[0] == 'v' else w.sw)[r[1]] = True
                        self.hazards(w, i); self.timing(w, i)
                        try:
                            y = i.fn(w, i)
                        except EmuError as ex:
                            raise EmuError(f"wg {wg.id} wave {w.wid} line {i.line} [{i.text}]: {ex}")
                        if y: break
                live = [w for w in wg.waves if not w.done]
                if live and all(w.at_bar for w in live):
                    wg.epoch += 1; tm = max(w.t for w in live)
                    for w in live: w.at_bar = False; w.t = tm
                    progress = True
            if not alive: break
            if not progress: raise EmuError("deadlock")
        return wgs

    def sop2(self, w, i):
        o = i.ops; f, b64, setscc = SOP2[i.mn]
        if b64:
            r = f(w.rs64(o[1]), (w.rs64(o[2]) if o[2].n == 2 or o[2].k == 'c' else w.rs(o[2])) if len(o) > 2 else 0, w.scc)
            if isinstance(r, tuple): r, w.scc = r
            elif setscc: w.scc = int((r & 0xFFFFFFFFFFFFFFFF) != 0)
            w.ws64(o[0], r)
        else:
            r = f(w.rs(o[1]), w.rs(o[2]) if len(o) > 2 else 0, w.scc)
            if isinstance(r, tuple): r, w.scc = r
            elif setscc: w.scc = int((r & 0xFFFFFFFF) != 0)
            w.wsr(o[0], r)
    def scmp(self, w, i):
        if i.mn.endswith("64"): w.scc = int(SCMP[i.mn](w.rs64(i.ops[0]), w.rs64(i.ops[1])))
        else: w.scc = int(SCMP[i.mn](w.rs(i.ops[0]), w.rs(i.ops[1])))
    def x_s_addk_i32(self, w, i): w.wsr(i.ops[0], w.rs(i.ops[0]) + i.ops[1].val); w.scc = 0
    def x_s_and_saveexec_b64(self, w, i):
        e = int(w.s[EXEC]) | (int(w.s[EXEC + 1]) << 32); m = w.rs64(i.ops[1])
        w.ws64(i.ops[0], e); w.ws64(Op('s', EXEC, 2), e & m); w.scc = int((e & m) != 0)
    def sload(self, w, i):
        o = i.ops; a = w.rs64(o[1]) + w.rs(o[2]); b, arr, _ = self.mem.find(a)
        d = arr[a - b:a - b + 4 * o[0].n].view(np.uint32)
        for j in range(o[0].n): w.s[o[0].i + j] = d[j]; w.pend[('s', o[0].i + j)] = i.line
        w.lgq.append(("smem", i.wr, None))
    def x_s_memtime(self, w, i): w.ws64(i.ops[0], w.t); w.lgq.append(("smem", [], None))
    x_s_memrealtime = x_s_memtime
    def x_s_getpc_b64(self, w, i): w.ws64(i.ops[0], 0); w.pc_line = i.line
    def x_global_load_dword(self, w, i):
        self.code_reach[i.line] = max(self.code_reach.get(i.line, 0), int(w.rv(i.ops[1]).max()))
        for r in i.wr: w.pend[r] = i.line
        w.vmq.append(("ld", i.wr, None))
    def x_s_getreg_b32(self, w, i): w.wsr(i.ops[0], w.wg.id & 7)
    def x_s_nop(self, w, i): pass
    x_s_setprio = x_v_nop = x_s_nop
    def x_buffer_inv(self, w, i): w.vmq.append(("inv", [], None))
    x_buffer_wbl2 = x_buffer_inv
    def x_s_sleep(self, w, i): return True
    def x_s_endpgm(self, w, i): w.done = True; return True
    def x_s_barrier(self, w, i): w.at_bar = True; return True
    def x_s_branch(self, w, i): w.pc = i.target; w.t += 16
    def br(self, w, i, c):
        if c: w.pc = i.target; w.t += 16
    def x_s_cbranch_scc0(self, w, i): self.br(w, i, not w.scc)
    def x_s_cbranch_scc1(self, w, i): self.br(w, i, w.scc)
    def x_s_cbranch_vccz(self, w, i): self.br(w, i, w.rs64(Op('s', VCC, 2)) == 0)
    def x_s_cbranch_vccnz(self, w, i): self.br(w, i, w.rs64(Op('s', VCC, 2)) != 0)
    def x_s_cbranch_execz(self, w, i): self.br(w, i, not w.em.any())
    def x_s_cbranch_execnz(self, w, i): self.br(w, i, w.em.any())
    def retire(self, w, e):
        kind, regs, idx = e
        still = {r for q in (w.lgq, w.vmq) for x in q for r in x[1]}
        for r in regs:
            if r not in still: w.pend.pop(r, None)
        wg = w.wg
        if kind in ("dma", "dsw"):
            m = (wg.w_wave[idx] == w.wid) & (wg.w_epoch[idx] == PEND)
            wg.w_epoch[idx[m]] = wg.epoch
        elif kind == "dsr":
            wg.r_epoch[w.wid, idx] = wg.epoch
    def x_s_waitcnt(self, w, i):
        if "vmcnt" in i.mods:
            assert i.mods["vmcnt"] <= 63
            while len(w.vmq) > i.mods["vmcnt"]: self.retire(w, w.vmq.pop(0))
        if "lgkmcnt" in i.mods:
            n = i.mods["lgkmcnt"]; assert n <= 15
            if n and any(e[0] == "smem" for e in w.lgq): self.w(i, "counted lgkmcnt with SMEM outstanding")
            while len(w.lgq) > n: self.retire(w, w.lgq.pop(0))

    def vint(self, w, i):
        o = i.ops; w.wv(o[0], VI[i.mn](*[w.rv(x) for x in o[1:]]).astype(np.uint32))
    def vflt(self, w, i):
        o = i.ops; w.wv(o[0], VF[i.mn](*[w.rf(x) for x in o[1:]]).astype(np.float32))
    def x_v_fmac_f32(self, w, i):
        o = i.ops; w.wv(o[0], (w.rf(o[1]).astype(np.float64) * w.rf(o[2]) + w.rf(o[0])).astype(np.float32))
    def vcmp(self, w, i):
        _, _, c, t = i.mn.split("_"); o = i.ops
        if t == "f32": a, b = w.rf(o[1]), w.rf(o[2])
        elif t == "i32": a, b = w.rv(o[1]).view(np.int32), w.rv(o[2]).view(np.int32)
        else: a, b = w.rv(o[1]), w.rv(o[2])
        f = {"lt": lambda: a < b, "le": lambda: a <= b, "gt": lambda: a > b, "ge": lambda: a >= b, "eq": lambda: a == b, "ne": lambda: a != b,
             "neq": lambda: a != b, "nge": lambda: ~(a >= b), "ngt": lambda: ~(a > b), "nle": lambda: ~(a <= b), "nlt": lambda: ~(a < b)}[c]
        w.wmask(o[0], f())
    def x_v_cndmask_b32(self, w, i):
        o = i.ops
        a = w.rv(o[1]); b = w.rv(o[2])
        if o[1].neg: a = a ^ U32(0x80000000)
        if o[2].neg: b = b ^ U32(0x80000000)
        w.wv(o[0], np.where(w.mask(o[3]), b, a))
    def x_v_readfirstlane_b32(self, w, i): w.wsr(i.ops[0], int(w.rv(i.ops[1])[np.argmax(w.em)]))
    def x_v_readlane_b32(self, w, i): w.wsr(i.ops[0], int(w.rv(i.ops[1])[w.rs(i.ops[2]) & 63]))
    def x_v_writelane_b32(self, w, i): w.v[i.ops[0].i][w.rs(i.ops[2]) & 63] = w.rs(i.ops[1])
    def x_v_cvt_pk_bf16_f32(self, w, i):
        o = i.ops; w.wv(o[0], bf16_rne(w.rf(o[1])) | (bf16_rne(w.rf(o[2])) << U32(16)))
    def x_v_cvt_f32_u32(self, w, i): w.wv(i.ops[0], w.rv(i.ops[1]).astype(np.float32))
    def pk(self, w, i, f):
        o = i.ops
        def hi(k):
            x = o[k]
            sel = i.mods.get("op_sel_hi", "[1,1,1]").strip("[]").split(",")
            return w.rf(x, 1) if (x.n == 2 and sel[k - 1] == "1") else w.rf(x, 0)
        lo_ = f(*[w.rf(x, 0) for x in o[1:]]); hi_ = f(*[hi(k) for k in range(1, len(o))])
        w.wv(o[0], lo_.astype(np.float32), 0); w.wv(o[0], hi_.astype(np.float32), 1)
    def x_v_pk_mul_f32(self, w, i): self.pk(w, i, lambda a, b: a * b)
    def x_v_pk_add_f32(self, w, i): self.pk(w, i, lambda a, b: a + b)
    def x_v_pk_fma_f32(self, w, i): self.pk(w, i, lambda a, b, c: a.astype(np.float64) * b + c)
    @staticmethod
    def dot2(a, b, c):
        lo = lambda x: (x << U32(16)).view(np.float32).astype(np.float64)
        hi = lambda x: (x & U32(0xFFFF0000)).view(np.float32).astype(np.float64)
        return (lo(a) * lo(b) + hi(a) * hi(b) + c).astype(np.float32)
    def x_v_dot2_f32_bf16(self, w, i): o = i.ops; w.wv(o[0], self.dot2(w.rv(o[1]), w.rv(o[2]), w.rf(o[3])))
    def x_v_dot2c_f32_bf16(self, w, i): o = i.ops; w.wv(o[0], self.dot2(w.rv(o[1]), w.rv(o[2]), w.rf(o[0])))
    def x_v_permlane32_swap_b32(self, w, i):
        d, s_ = w.v[i.ops[0].i], w.v[i.ops[1].i]
        t = s_[:32].copy(); s_[:32] = d[32:]; d[32:] = t
    def x_v_permlane16_swap_b32(self, w, i):
        d, s_ = w.v[i.ops[0].i], w.v[i.ops[1].i]
        for b in (0, 32):
            t = s_[b:b + 16].copy(); s_[b:b + 16] = d[b + 16:b + 32]; d[b + 16:b + 32] = t
    def x_v_mbcnt_lo_u32_b32(self, w, i):
        assert i.ops[1].val == -1; w.wv(i.ops[0], np.minimum(LANES, 32) + w.rv(i.ops[2]))
    def x_v_mbcnt_hi_u32_b32(self, w, i):
        assert i.ops[1].val == -1; w.wv(i.ops[0], np.maximum(LANES, 32) - U32(32) + w.rv(i.ops[2]))
    def unpack(self, w, o):
        x = w.v[o.i:o.i + 4]
        r = np.empty((64, 8), np.uint32); r[:, 0::2] = (x << U32(16)).T; r[:, 1::2] = (x & U32(0xFFFF0000)).T
        return r.view(np.float32)
    def x_v_mfma_f32_16x16x32_bf16(self, w, i):
        o = i.ops
        if not w.full: self.w(i, "MFMA with partial exec")
        a = self.unpack(w, o[1]).reshape(4, 16, 8).transpose(1, 0, 2).reshape(16, 32)
        b = self.unpack(w, o[2]).reshape(4, 16, 8).transpose(1, 0, 2).reshape(16, 32)
        d = a @ b.T
        d = d.reshape(4, 4, 16).transpose(1, 0, 2).reshape(4, 64)
        if o[3].k == 'v': d = d + w.v[o[3].i:o[3].i + 4].view(np.float32)
        else: assert o[3].val == 0
        w.v[o[0].i:o[0].i + 4] = d.view(np.uint32)

    def x_v_smfmac_f32_16x16x64_bf16(self, w, i):
        o = i.ops; ac = self.unpack(w, o[1]); idx = w.v[o[3].i]; a = np.zeros((64, 16), np.float32)
        for m in range(4):
            for e in range(2): a[np.arange(64), 4 * m + ((idx >> U32(4 * m + 2 * e)) & U32(3))] += ac[:, 2 * m + e]
        a = a.reshape(4, 16, 16).transpose(1, 0, 2).reshape(16, 64)
        b = np.concatenate([self.unpack(w, Op('v', o[2].i + 4 * hf, 4)).reshape(4, 16, 8).transpose(1, 0, 2).reshape(16, 32) for hf in range(2)], 1)
        sel = np.abs(a).sum(0) > 0
        d = (a[:, sel] @ b[:, sel].T).reshape(4, 4, 16).transpose(1, 0, 2).reshape(4, 64) + w.v[o[0].i:o[0].i + 4].view(np.float32)
        w.v[o[0].i:o[0].i + 4] = d.astype(np.float32).view(np.uint32)

    def ldsidx(self, w, i, addr, nd, align):
        a = addr.astype(np.int64) + int(i.mods.get("offset", "0"), 0)
        act = a[w.em]
        if (act % align).any(): raise EmuError(f"misaligned LDS address {act[act % align != 0][0]}")
        if (act + 4 * nd > w.wg.size).any(): raise EmuError(f"LDS address out of range {act.max()}")
        return np.where(w.em, a, 0)[:, None] // 4 + np.arange(nd)[None, :]
    def chk_read(self, w, i, idx):
        wg = w.wg; ww = wg.w_wave[idx]; we = wg.w_epoch[idx]
        if (ww < 0).any(): self.w(i, "reads never-written LDS")
        other = (ww != w.wid) & (ww >= 0)
        if (other & (we >= wg.epoch)).any(): self.w(i, "LDS RAW race (other wave's write not waited+barriered)")
        own = (ww == w.wid) & (we == PEND)
        if own.any():
            pend_dma = [e[2] for e in w.vmq if e[0] == "dma"]
            if pend_dma and np.isin(idx[own], np.concatenate(pend_dma)).any(): self.w(i, "LDS read of own pending DMA")
        wg.r_epoch[w.wid, idx] = PEND
    def chk_write(self, w, i, idx, dma):
        wg = w.wg
        for k in range(len(wg.waves)):
            re_ = wg.r_epoch[k, idx]
            if k != w.wid and (re_ >= wg.epoch).any(): self.w(i, f"LDS WAR race vs wave {k}")
            if k == w.wid and dma and (re_ == PEND).any(): self.w(i, "DMA over own un-waited ds_read")
        other = (wg.w_wave[idx] != w.wid) & (wg.w_wave[idx] >= 0)
        if (other & (wg.w_epoch[idx] >= wg.epoch)).any(): self.w(i, "LDS WAW race")
        wg.w_wave[idx] = w.wid; wg.w_epoch[idx] = PEND
    def banks(self, w, i, idx, groups, nb):
        extra = 0
        for g in groups:
            g = [x for x in g if w.em[x]]
            if not g: continue
            u = np.unique(idx[g].reshape(-1)); extra += np.bincount(u % nb).max() - 1
        if extra:
            k = (i.line, i.text); self.conf[k] = max(self.conf.get(k, 0), extra)
    def dsread(self, w, i):
        o = i.ops; nd = o[0].n
        idx = self.ldsidx(w, i, w.rv(o[1]), nd, 4 * nd if nd != 3 else 16)
        act = idx[w.em].reshape(-1); self.chk_read(w, i, act)
        if nd == 4: self.banks(w, i, idx, B128_GROUPS, 64)
        elif nd == 2: self.banks(w, i, idx, [range(32), range(32, 64)], 64)
        elif nd == 1: self.banks(w, i, idx, [range(32), range(32, 64)], 32)
        for j in range(nd): w.wv(o[0], w.wg.lds[idx[:, j]], j)
        for r in i.wr: w.pend[r] = -i.line
        w.lgq.append(("dsr", i.wr, act))
    def x_ds_read_b64_tr_b16(self, w, i):
        o = i.ops
        if not w.full: self.w(i, "tr read with partial exec")
        idx = self.ldsidx(w, i, w.rv(o[1]), 2, 8); self.chk_read(w, i, idx.reshape(-1))
        self.banks(w, i, idx, [range(32), range(32, 64)], 64)
        d = np.ascontiguousarray(w.wg.lds[idx]).view(np.uint16).reshape(4, 4, 16)
        t = np.ascontiguousarray(d.transpose(0, 2, 1)).reshape(64, 4).view(np.uint32)
        w.wv(o[0], t[:, 0], 0); w.wv(o[0], t[:, 1], 1)
        for r in i.wr: w.pend[r] = -i.line
        w.lgq.append(("dsr", i.wr, idx.reshape(-1)))
    def dswrite(self, w, i):
        o = i.ops
        if i.mn == "ds_write_b16" or i.mn == "ds_write_b16_d16_hi":
            a = w.rv(o[0]).astype(np.int64) + int(i.mods.get("offset", "0"), 0)
            x = w.rv(o[1]); x = (x >> U32(16)) if "hi" in i.mn else x
            act = (a[w.em] // 4); self.chk_write(w, i, act, False)
            w.wg.lds.view(np.uint16)[a[w.em] // 2] = x[w.em].astype(np.uint16)
            w.lgq.append(("dsw", [], act)); return
        nd = o[1].n
        idx = self.ldsidx(w, i, w.rv(o[0]), nd, 4 * nd if nd != 3 else 16)
        act = idx[w.em].reshape(-1); self.chk_write(w, i, act, False)
        gs = {1: 32, 2: 16, 3: 8, 4: 8}[nd]
        self.banks(w, i, idx, [range(k, k + gs) for k in range(0, 64, gs)], 32)
        for j in range(nd): w.wg.lds[idx[w.em, j]] = w.rv(o[1], j)[w.em]
        w.lgq.append(("dsw", [], act))
    def x_ds_or_b32(self, w, i):
        o = i.ops; idx = self.ldsidx(w, i, w.rv(o[0]), 1, 4)[w.em, 0]
        np.bitwise_or.at(w.wg.lds, idx, w.rv(o[1])[w.em])
        wg = w.wg; wg.w_wave[idx] = w.wid; wg.w_epoch[idx] = PEND
        w.lgq.append(("dsw", [], idx))
    def x_ds_bpermute_b32(self, w, i):
        o = i.ops; w.wv(o[0], w.rv(o[2])[(w.rv(o[1]) >> U32(2)) & U32(63)])
        for r in i.wr: w.pend[r] = -i.line
        w.lgq.append(("x", i.wr, None))

    def baddr(self, w, i, vo, srd, so, nbytes):
        base = int(w.s[srd.i]) | ((int(w.s[srd.i + 1]) & 0xFFFF) << 32); nrec = int(w.s[srd.i + 2])
        assert int(w.s[srd.i + 3]) == 0x20000 and int(w.s[srd.i + 1]) >> 16 == 0
        off = np.zeros(64, np.int64)
        if "offen" in i.mods: off = w.rv(vo).astype(np.int64)
        io = int(i.mods.get("offset", "0"), 0); assert io < 4096
        off = off + io + w.rs(so)
        b, arr, name = self.mem.find(base); self.cur_buf = name
        if base - b + nrec > len(arr): raise EmuError(f"SRD range exceeds buffer {name}")
        al = min(nbytes, 4)
        if (off[w.em] % al).any(): raise EmuError("misaligned global access")
        return arr, base - b, off, nrec, io
    def bload(self, w, i):
        o = i.ops; lds = "lds" in i.mods
        if not w.em.any(): self.w(i, "VMEM with exec=0")
        if i.mn in ("buffer_load_ushort", "buffer_load_short_d16"):
            arr, b0, off, nrec, io = self.baddr(w, i, o[1], o[2], o[3], 2)
            ok = (off + 2 <= nrec); a = np.where(ok, b0 + off, 0)
            x = np.where(ok, arr[a].astype(np.uint32) | (arr[a + 1].astype(np.uint32) << U32(8)), 0)
            w.wv(o[0], x.astype(np.uint32))
        else:
            nd = {"": 1, "x2": 2, "x3": 3, "x4": 4}[i.mn[len("buffer_load_dword"):]]
            vo, srd, so = (o[0], o[1], o[2]) if lds else (o[1], o[2], o[3])
            arr, b0, off, nrec, io = self.baddr(w, i, vo, srd, so, 4 * nd)
            a32 = arr[:len(arr) // 4 * 4].view(np.uint32)
            aa = off[:, None] + 4 * np.arange(nd)[None, :]
            ok = aa + 4 <= nrec
            x = np.where(ok, a32[np.where(ok, (b0 + aa) // 4, 0)], 0).astype(np.uint32)
            if lds:
                la = (int(w.s[M0]) & 0x3FFFC) + io + np.arange(64)[:, None] * 4 * nd + 4 * np.arange(nd)[None, :]
                if (la[w.em] + 4 > w.wg.size).any(): raise EmuError("LDS DMA out of range")
                idx = (la[w.em] // 4).reshape(-1); self.chk_write(w, i, idx, True)
                w.wg.lds[idx] = x[w.em].reshape(-1)
                w.vmq.append(("dma", [], idx));
                if len(w.vmq) > 63: self.w(i, "vmcnt overflow")
                return
            for j in range(nd): w.wv(o[0], x[:, j], j)
        for r in i.wr: w.pend[r] = i.line
        w.vmq.append(("ld", i.wr, None))
        if len(w.vmq) > 63: self.w(i, "vmcnt overflow")
    def bstore(self, w, i):
        o = i.ops
        if not w.em.any(): self.w(i, "VMEM with exec=0")
        if i.mn == "buffer_store_short":
            arr, b0, off, nrec, io = self.baddr(w, i, o[1], o[2], o[3], 2)
            ok = (off + 2 <= nrec) & w.em
            arr[:len(arr) // 2 * 2].view(np.uint16)[(b0 + off[ok]) // 2] = w.rv(o[0])[ok].astype(np.uint16)
        else:
            nd = o[0].n
            arr, b0, off, nrec, io = self.baddr(w, i, o[1], o[2], o[3], 4 * nd)
            a32 = arr[:len(arr) // 4 * 4].view(np.uint32)
            for j in range(nd):
                ok = (off + 4 * j + 4 <= nrec) & w.em
                a32[(b0 + off[ok]) // 4 + j] = w.rv(o[0], j)[ok]
        ok = (off + 4 <= nrec) & w.em; rng = None
        if ok.any():
            rng = (self.cur_buf, int(b0 + off[ok].min()), int(b0 + off[ok].max()), i.line)
            if self.on_store: self.on_store(w, i, self.cur_buf, b0 + off[ok], w.rv(o[0])[ok])
        w.vmq.append(("st", [], rng))
        if len(w.vmq) > 63: self.w(i, "vmcnt overflow")
    def atomic(self, w, i, f):
        o = i.ops; arr, b0, off, nrec, io = self.baddr(w, i, o[1], o[2], o[3], 4)
        a32 = arr[:len(arr) // 4 * 4].view(np.uint32); old = np.zeros(64, np.uint32); x = w.rv(o[0])
        for l in np.nonzero(w.em & (off + 4 <= nrec))[0]:
            k = (b0 + off[l]) // 4; old[l] = a32[k]; a32[k] = f(int(a32[k]), int(x[l])) & 0xFFFFFFFF
        ok = w.em & (off + 4 <= nrec)
        if ok.any() and self.on_store: self.on_store(w, i, self.cur_buf, b0 + off[ok], x[ok])
        if "sc0" in i.mods:
            w.wv(o[0], old)
            for r in i.wr: w.pend[r] = i.line
        w.vmq.append(("at", i.wr, None))
    def x_buffer_atomic_add(self, w, i): self.atomic(w, i, lambda a, b: a + b)
    def x_buffer_atomic_or(self, w, i): self.atomic(w, i, lambda a, b: a | b)

M32 = 0xFFFFFFFF
SOP2 = {
    "s_mov_b32": (lambda a, b, c: a, 0, 0), "s_movk_i32": (lambda a, b, c: a, 0, 0), "s_mov_b64": (lambda a, b, c: a, 1, 0),
    "s_add_u32": (lambda a, b, c: (a + b, int(a + b > M32)), 0, 0), "s_addc_u32": (lambda a, b, c: (a + b + c, int(a + b + c > M32)), 0, 0),
    "s_subb_u32": (lambda a, b, c: (a - b - c, int(b + c > a)), 0, 0),
    "s_sub_u32": (lambda a, b, c: (a - b, int(b > a)), 0, 0), "s_add_i32": (lambda a, b, c: (a + b, 0), 0, 0), "s_sub_i32": (lambda a, b, c: (a - b, 0), 0, 0),
    "s_mul_i32": (lambda a, b, c: a * b, 0, 0), "s_mul_hi_u32": (lambda a, b, c: (a * b) >> 32, 0, 0),
    "s_lshl_b32": (lambda a, b, c: a << (b & 31), 0, 1), "s_lshr_b32": (lambda a, b, c: a >> (b & 31), 0, 1),
    "s_ashr_i32": (lambda a, b, c: sx(a) >> (b & 31), 0, 1),
    "s_lshl_b64": (lambda a, b, c: a << (b & 63), 1, 1), "s_lshr_b64": (lambda a, b, c: a >> (b & 63), 1, 1),
    "s_and_b32": (lambda a, b, c: a & b, 0, 1), "s_or_b32": (lambda a, b, c: a | b, 0, 1), "s_xor_b32": (lambda a, b, c: a ^ b, 0, 1),
    "s_andn2_b32": (lambda a, b, c: a & ~b, 0, 1), "s_not_b32": (lambda a, b, c: ~a, 0, 1),
    "s_and_b64": (lambda a, b, c: a & b, 1, 1), "s_or_b64": (lambda a, b, c: a | b, 1, 1), "s_xor_b64": (lambda a, b, c: a ^ b, 1, 1),
    "s_andn2_b64": (lambda a, b, c: a & ~b, 1, 1), "s_not_b64": (lambda a, b, c: ~a, 1, 1),
    "s_cselect_b32": (lambda a, b, c: a if c else b, 0, 0), "s_cselect_b64": (lambda a, b, c: a if c else b, 1, 0),
    "s_min_u32": (lambda a, b, c: (min(a, b), int(a < b)), 0, 0), "s_max_u32": (lambda a, b, c: (max(a, b), int(a > b)), 0, 0),
    "s_min_i32": (lambda a, b, c: (min(sx(a), sx(b)), int(sx(a) < sx(b))), 0, 0), "s_max_i32": (lambda a, b, c: (max(sx(a), sx(b)), int(sx(a) > sx(b))), 0, 0),
    "s_lshl1_add_u32": (lambda a, b, c: ((a << 1) + b, 0), 0, 0), "s_lshl2_add_u32": (lambda a, b, c: ((a << 2) + b, 0), 0, 0),
    "s_lshl3_add_u32": (lambda a, b, c: ((a << 3) + b, 0), 0, 0), "s_lshl4_add_u32": (lambda a, b, c: ((a << 4) + b, 0), 0, 0),
    "s_bfe_u32": (lambda a, b, c: (a >> (b & 31)) & ((1 << ((b >> 16) & 127)) - 1), 0, 1),
}
SCMP = {
    "s_cmp_eq_u32": lambda a, b: a == b, "s_cmp_lg_u32": lambda a, b: a != b, "s_cmp_lt_u32": lambda a, b: a < b, "s_cmp_le_u32": lambda a, b: a <= b,
    "s_cmp_gt_u32": lambda a, b: a > b, "s_cmp_ge_u32": lambda a, b: a >= b,
    "s_cmp_eq_i32": lambda a, b: a == b, "s_cmp_lg_i32": lambda a, b: a != b, "s_cmp_lt_i32": lambda a, b: sx(a) < sx(b), "s_cmp_le_i32": lambda a, b: sx(a) <= sx(b),
    "s_cmp_gt_i32": lambda a, b: sx(a) > sx(b), "s_cmp_ge_i32": lambda a, b: sx(a) >= sx(b),
    "s_cmp_eq_u64": lambda a, b: a == b, "s_cmp_lg_u64": lambda a, b: a != b,
    "s_bitcmp1_b32": lambda a, b: (a >> (b & 31)) & 1, "s_bitcmp0_b32": lambda a, b: not ((a >> (b & 31)) & 1),
}
_31 = U32(31)
u24 = lambda x: (x & U32(0xFFFFFF)).astype(np.uint64)
VI = {
    "v_mov_b32": lambda a: a, "v_accvgpr_read_b32": lambda a: a, "v_accvgpr_write_b32": lambda a: a, "v_accvgpr_mov_b32": lambda a: a,
    "v_add_u32": lambda a, b: a + b, "v_sub_u32": lambda a, b: a - b, "v_subrev_u32": lambda a, b: b - a,
    "v_lshlrev_b32": lambda a, b: b << (a & _31), "v_lshrrev_b32": lambda a, b: b >> (a & _31),
    "v_ashrrev_i32": lambda a, b: (b.view(np.int32) >> (a & _31).astype(np.int32)).view(np.uint32),
    "v_and_b32": lambda a, b: a & b, "v_or_b32": lambda a, b: a | b, "v_xor_b32": lambda a, b: a ^ b,
    "v_mul_u32_u24": lambda a, b: u24(a) * u24(b), "v_mul_lo_u32": lambda a, b: a * b,
    "v_mul_hi_u32": lambda a, b: (a.astype(np.uint64) * b) >> np.uint64(32),
    "v_mad_u32_u24": lambda a, b, c: u24(a) * u24(b) + c, "v_add3_u32": lambda a, b, c: a + b + c,
    "v_lshl_add_u32": lambda a, b, c: (a << (b & _31)) + c, "v_add_lshl_u32": lambda a, b, c: (a + b) << (c & _31),
    "v_lshl_or_b32": lambda a, b, c: (a << (b & _31)) | c, "v_and_or_b32": lambda a, b, c: (a & b) | c, "v_or3_b32": lambda a, b, c: a | b | c,
    "v_xad_u32": lambda a, b, c: (a ^ b) + c,
    "v_bfe_u32": lambda a, b, c: (a >> (b & _31)) & ((U32(1) << (c & _31)) - U32(1)),
    "v_min_u32": np.minimum, "v_max_u32": np.maximum,
    "v_max_i32": lambda a, b: np.maximum(a.view(np.int32), b.view(np.int32)).view(np.uint32),
    "v_min_i32": lambda a, b: np.minimum(a.view(np.int32), b.view(np.int32)).view(np.uint32),
    "v_perm_b32": None,
}
def _perm(a, b, c):
    src = np.stack([(b >> U32(8 * k)) & U32(255) for k in range(4)] + [(a >> U32(8 * k)) & U32(255) for k in range(4)])
    r = np.zeros(64, np.uint32)
    for k in range(4):
        sel = (c >> U32(8 * k)) & U32(255)
        byte = np.where(sel < 8, src[np.minimum(sel, 7), np.arange(64)], np.where(sel == 12, 0, 255)).astype(np.uint32)
        r |= byte << U32(8 * k)
    return r
VI["v_perm_b32"] = _perm
VF = {
    "v_add_f32": lambda a, b: a + b, "v_sub_f32": lambda a, b: a - b, "v_subrev_f32": lambda a, b: b - a, "v_mul_f32": lambda a, b: a * b,
    "v_max_f32": np.fmax, "v_min_f32": np.fmin, "v_max3_f32": lambda a, b, c: np.fmax(np.fmax(a, b), c),
    "v_fma_f32": lambda a, b, c: a.astype(np.float64) * b + c,
    "v_exp_f32": np.exp2, "v_log_f32": np.log2, "v_rcp_f32": lambda a: np.float32(1) / a, "v_rsq_f32": lambda a: 1 / np.sqrt(a), "v_sqrt_f32": np.sqrt,
}
```

```python
import re
from emu import Emu, M0

_dec = Emu("")
SCC_W = re.compile(r"s_(add|sub|addc|lshl|lshr|ashr|and|or|xor|andn2|not|min|max|cmp|bfe|bitcmp|lshl\d_add|addk)")
SCC_R = re.compile(r"s_(cselect|addc|subb|cbranch_scc)")

def decode(text):
    if text.endswith(":") or text.startswith(";"):
        i = _dec.decode("s_nop 0", 0); i.text = text; i.ws = 0; i.mn = "label"; return i
    if text.startswith("WAITVM"):
        i = _dec.decode("s_waitcnt vmcnt(0)", 0); i.text = text; return i
    i = _dec.decode(text.split(";")[0].strip(), 0); i.text = text
    rd, wr = list(i.rd), list(i.wr)
    i.rd, i.wr = rd, wr
    return i

def need_ws(p, i):
    rd, wr, pw = set(i.rd), set(i.wr), set(p.wr)
    isvalu = i.cls in "VT"; need = 0
    if p.cls == "M":
        if i.cls == "M":
            if pw & set(i.ab): need = 8
            elif pw & set(i.srcc) and (p.wr != i.srcc or p.mn != i.mn): need = 10 if "smfmac" in p.mn else 6
        elif (pw & rd) or (pw & wr): need = 12 if "smfmac" in p.mn else 8
        if isvalu and set(p.srcc) & wr: need = max(need, 3)
    elif p.cls in "VT":
        pv = {r for r in pw if r[0] == 'v'}; ps = {r for r in pw if r[0] == 's'}
        if i.cls == "M" and pv & rd: need = 2
        if p.cls == "T" and i.cls == "V" and pv & rd: need = max(need, 1)
        if isvalu and ps & rd: need = max(need, 4 if i.mn in ("v_readlane_b32", "v_writelane_b32") else 2)
        if i.cls == "G" and ps & rd: need = max(need, 5)
        if i.cls == "S" and ps & rd: need = max(need, 2)
        if i.mn in ("v_readfirstlane_b32", "v_readlane_b32") and pv & rd: need = max(need, 1)
        if (i.mn.startswith("v_permlane") or "dpp" in i.mn) and pv & rd: need = max(need, 2)
        if p.mn.startswith("v_dot2") and (isvalu or i.cls == "M") and (pv & (rd | wr)):
            same = i.mn == p.mn
            accop = i.ops[0] if i.mn == "v_dot2c_f32_bf16" else (i.ops[3] if same else None)
            if not (same and not (pv & set(i.ops[1].regs() + i.ops[2].regs())) and pv & set(accop.regs())): need = max(need, 3)
    elif p.cls == "S":
        if ('s', M0) in pw and i.cls == "G" and "lds" in i.mods: need = 1
    elif p.cls == "G":
        if "store_dwordx4" in p.mn or "store_dwordx3" in p.mn:
            if set(p.ops[0].regs()) & wr: need = 2 if isvalu else 1
    return need

def short_ws(out, i):
    d = 0; miss = 0
    for p in reversed(out):
        if d >= 13: break
        miss = max(miss, need_ws(p, i) - d)
        d += p.ws
    return miss

class Node:
    def __init__(self, text, at=None, by=None, rd=(), wr=(), lead=None, tag=None, pin=False, bg=False):
        self.ins = [decode(t) for t in (text if isinstance(text, (list, tuple)) else [text])]
        self.rd = set(rd); self.wr = set(wr)
        for i in self.ins:
            self.rd |= set(i.rd); self.wr |= set(i.wr)
        self.is_m = self.ins[0].cls == "M"
        self.at, self.by, self.lead, self.tag, self.pin = at, by, lead, tag, pin
        self.preds = []; self.succs = []; self.gap = None; self.bg = bg
        for k, i in enumerate(self.ins):
            assert not SCC_R.match(i.mn) or any(SCC_W.match(x.mn) for x in self.ins[:k]), i.text
        for i in self.ins: i.target = tag
        self.isds = any(i.cls == "D" for i in self.ins)

class Region:
    DS_LEAD = 7
    LDS_Q = 16
    VM_Q = 0
    def __init__(self, name=""):
        self.nodes = []; self.nm = 0; self.name = name; self.bg = False
        self.empty = set(); self.noscalar = set()
        self.cap = 2; self.vm_cost = 64
        self.cold = False
    def add(self, text, **kw):
        kw.setdefault("bg", self.bg)
        n = Node(text, **kw); n.seq = len(self.nodes); n.pos = self.nm
        if n.is_m: n.gap = self.nm; self.nm += 1
        self.nodes.append(n); return n
    def __call__(self, text, **kw): return self.add(text, **kw)

    def schedule(self, prev=(), verbose=False):
        nodes = self.nodes
        lastw, readers = {}, {}
        for n in nodes:
            ps = {}
            for r in n.rd:
                if r in lastw: ps[lastw[r].seq] = (lastw[r], "raw")
            for r in n.wr:
                if r in lastw: ps.setdefault(lastw[r].seq, (lastw[r], "waw"))
                for q in readers.get(r, ()):
                    if q is not n: ps.setdefault(q.seq, (q, "war"))
            for r in n.rd: readers.setdefault(r, []).append(n)
            for r in n.wr: lastw[r] = n; readers[r] = []
            n.preds = list(ps.values())
            for p, k in n.preds: p.succs.append((n, k))
        NM = self.nm
        for n in reversed(nodes):
            if n.is_m: n.dl = n.gap - 1; n.hard = n.gap - 1; continue
            dl = NM - 1 if n.by is None else n.by; hard = NM - 1
            for q, k in n.succs:
                lead = 0
                if k == "raw": lead = n.lead if n.lead is not None else (self.DS_LEAD if n.isds else 1)
                dl = min(dl, q.dl - lead); hard = min(hard, q.hard)
            n.dl, n.hard = dl, hard
        out = list(prev); n0 = len(out)
        todo = [n for n in nodes if not n.is_m]
        ms = [n for n in nodes if n.is_m]
        done = set(); over = 0
        def ready(n): return all(p.seq in done for p, k in n.preds)
        def cost(n, a_free):
            c = 0
            for k, i in enumerate(n.ins):
                if i.cls == "S":
                    if a_free and k == 0: continue
                    c += i.ws
                else: c += 2 if i.cls in "TG" else 1
            return c
        busy = {"D": 0, "G": 0}
        def res_cost(i): return (8 if "b64" in i.mn or "b32" in i.mn else 16) if i.cls == "D" else self.vm_cost
        def res_ok(n, g):
            for i in n.ins:
                if i.cls in "DG" and busy[i.cls] - 16 * g > (self.LDS_Q if i.cls == "D" else self.VM_Q): return False
            return True
        def emit(n, g, force=False):
            for i in n.ins:
                if i.cls in "DG": busy[i.cls] = max(busy[i.cls], 16 * g) + res_cost(i)
                m = short_ws(out, i)
                if m > 0: out.append(decode(f"s_nop {m-1}"))
                out.append(i)
            n.gap = g; done.add(n.seq); todo.remove(n)
        def fill(g):
            nonlocal over
            a_free, cap = g not in self.noscalar, (self.cap if g not in self.empty else 0)
            while True:
                cands = [n for n in todo if (n.at is None or n.at <= g) and ready(n)]
                cands.sort(key=lambda n: (n.bg, n.dl, n.seq))
                pick = None
                if a_free:
                    for n in cands:
                        if n.ins[0].cls == "S" and cost(n, True) <= cap and short_ws(out, n.ins[0]) == 0:
                            if cost(n, True) == 0 or n is cands[0] or n.dl <= g + 1: pick = n; break
                if pick is None:
                    ok = []
                    for n in cands:
                        if cost(n, a_free) > cap or short_ws(out, n.ins[0]) > 0: continue
                        if n.ins[0].cls == "S" and n.dl > g: continue
                        if n.ins[0].cls == "D" and out[-1].cls == "T": continue
                        if not res_ok(n, g): continue
                        ok.append(n)
                    if ok:
                        pick = ok[0]
                        if cap == 2 and cost(pick, a_free) == 1 and pick.dl > g:
                            after = max(busy["D"], 16 * g) + res_cost(pick.ins[0]) - 16 * g if pick.isds else busy["D"] - 16 * g
                            mates = [n for n in ok[1:] + [q for q, k in pick.succs if not q.is_m and q in todo and all(p.seq in done or p is pick for p, _ in q.preds)
                                                          and (q.at is None or q.at <= g) and k != "raw"]
                                     if cost(n, False) == 1 and n.ins[0].cls != "S" and (not n.isds or after <= self.LDS_Q)]
                            twos = [n for n in ok if cost(n, a_free) == 2]
                            if not mates and twos: pick = twos[0]
                if pick is None: break
                cap -= cost(pick, a_free); a_free = False; emit(pick, g)
            while True:
                f = [n for n in todo if n.hard <= g or (n.pin and n.at <= g)]
                f = [n for n in f if ready(n)]
                if not f: break
                f.sort(key=lambda n: (n.dl, n.seq)); over += cost(f[0], False)
                if verbose: print(f"  [{self.name}] forced at gap {g}: {f[0].ins[0].text}")
                emit(f[0], g)
        while True:
            f = [n for n in todo if (n.hard < 0 or (self.cold and n.isds and n.dl < 0)) and ready(n)]
            if not f: break
            emit(min(f, key=lambda n: (n.hard, n.seq)), -1)
        busy["D"] = 0
        for g, m in enumerate(ms):
            assert ready(m), (self.name, g, m.ins[0].text, [p.ins[0].text for p, k in m.preds if p.seq not in done])
            k = short_ws(out, m.ins[0])
            if k > 0:
                out.append(decode(f"s_nop {k-1}")); over += k
                if verbose: print(f"  [{self.name}] nop {k} before mfma {g}")
            out.append(m.ins[0]); done.add(m.seq)
            fill(g)
        assert not todo, (self.name, [n.ins[0].text for n in todo])
        if verbose:
            late = [(n.ins[0].text, n.gap - n.dl) for n in nodes if not n.is_m and n.gap > n.dl + 2]
            print(f"[{self.name}] mfma {NM} overflow slots {over} late {len(late)} {late[:6]}")
        return out[n0:]

def plain(texts, prev=()):
    out = list(prev); n0 = len(out)
    for t in texts:
        i = decode(t) if isinstance(t, str) else t
        i.target = getattr(i, "target", None)
        m = short_ws(out, i)
        if m > 0: out.append(decode(f"s_nop {m-1}"))
        out.append(i)
    return out[n0:]

def tagged(text, tag):
    i = decode(text); i.target = tag; return i

def fix_waits(ins, carry=(), age=5):
    out = []
    q = [(set(c), -100, -100) for c in carry]
    nm = 0; last_m = None
    for i in ins:
        if i.text.startswith("WAITVM") and i.text.endswith("+lgkm"): q = []
        if i.mn == "s_waitcnt" and "lgkmcnt" in i.mods and not i.text.startswith("WAITVM"):
            q = q[len(q) - i.mods["lgkmcnt"]:] if i.mods["lgkmcnt"] < len(q) else q
            if i.mods["lgkmcnt"] == 0: q = []
        touch = set(i.rd) | (set(i.wr) if i.cls != "D" else set())
        k = max((n for n, e in enumerate(q) if e[0] & touch), default=-1)
        if len(q) >= 15 and i.cls == "D" and k < 0: k = 0
        if k >= 0:
            pos = len(out); nafter = 0
            if last_m is not None and (last_m + 1 >= len(out) or out[last_m + 1].cls != "S"):
                later = sum(1 for x in out[last_m + 1:] if x.cls == "D")
                if k < len(q) - later: pos = last_m + 1; nafter = later
            while k + 1 < len(q) - nafter and (q[k + 1][1] <= nm - age or q[k + 1][2] <= len(out) - 28): k += 1
            cnt = len(q) - nafter - (k + 1)
            merged = False
            if pos == len(out) and last_m is not None and last_m + 1 < len(out):
                x = out[last_m + 1]
                later = sum(1 for y in out[last_m + 1:] if y.cls == "D")
                if x.mn == "s_waitcnt" and not x.text.startswith("WAITVM") and k < len(q) - later:
                    c2 = len(q) - later - (k + 1)
                    vm = f"vmcnt({x.mods['vmcnt']}) " if "vmcnt" in x.mods else ""
                    out[last_m + 1] = decode(f"s_waitcnt {vm}lgkmcnt({min(c2, x.mods.get('lgkmcnt', 15))})"); merged = True
            if not merged: out.insert(pos, decode(f"s_waitcnt lgkmcnt({cnt})"))
            q = q[k + 1:]
        out.append(i)
        if i.cls == "D": q.append((set(i.wr), nm, len(out)))
        if i.cls == "M": nm += 1; last_m = len(out) - 1
    for n, i in enumerate(out):
        if i.text.startswith("WAITVM"):
            tags = i.text.split()[1:]; cnt = 0; found = False
            for p in reversed(out[:n]):
                if p.cls == "G":
                    if getattr(p, "target", None) in tags: found = True; break
                    cnt += 1
            if tags[0].startswith("pre"): cnt += int(tags[0][3:]); found = True
            assert found, i.text
            assert not any(p.cls == "G" and getattr(p, "target", None) in tags for p in out[n:]), i.text
            assert cnt < 64
            out[n] = decode(f"s_waitcnt vmcnt({cnt})" + (" lgkmcnt(0)" if "+lgkm" in tags else ""))
    return out, [sorted(e[0]) for e in q]

def texts(ins): return [i.text for i in ins]
```

```python
import os, sys, time
os.environ.setdefault('OMP_NUM_THREADS', '1'); os.environ.setdefault('MKL_NUM_THREADS', '1'); os.environ.setdefault('OPENBLAS_NUM_THREADS', '1')
import numpy as np
import gen, refnp as R
from emu import *
def main(h=5, scale_q=1.0, js=range(8)):
    txt = gen.generate()
    e = Emu(txt); inp = R.make_inputs(0, scale_q)
    ptrs = [e.mem.add(inp[k], k) for k in inp]
    out = np.full(2048 * 576, 0x7FC0, np.uint16); dbg = np.zeros(64, np.uint32); ws = np.full(0x5000000 // 2, 0x7FC1, np.uint16)
    po, pd, pw = e.mem.add(out, "out"), e.mem.add(dbg, "dbg"), e.mem.add(ws, "ws")
    wsb = e.mem.find(pw)[1].view(np.uint16); db = e.mem.find(pd)[1].view(np.uint32)
    wg = [(h >> 2) + 8 * (h & 3) + 32 * j for j in js]
    mine = np.zeros(4672, bool); mine[128 * h:128 * h + 128] = True; mine[4096 + 18 * h:4096 + 18 * h + 18] = True
    rng = np.random.default_rng(1); X0 = R.rb(rng.standard_normal((2048, 4672)).astype(np.float32)); X0[:, mine] = np.nan
    C = slice(gen.WS_CTX // 2, (gen.WS_CTX + gen.CTX_SZ) // 2); T = slice(gen.WS_WT // 2, (gen.WS_WT + gen.WT_SZ) // 2)
    wsb[C] = R.ctx_pack(X0)
    wr = R.wt_pack(inp).reshape(152, 36, 512); wt0 = wr.copy()
    for j in js:
        b = 8 * j + (h & 7)
        ks = 128 + 6 * (h >> 3) + b // 6
        if b < 30: wt0[ks, R.WT_CB[ks] // 6 == b % 6] = 0x7FC1
        ks = 32 * (h >> 3) + 4 * j + ((h & 7) >> 1); cb_ = R.WT_CB[ks]
        wt0[ks, np.where(cb_ < 32, cb_ >> 4, (cb_ >> 1) & 1) == (h & 1)] = 0x7FC1
    wsb[T] = wt0.reshape(-1); T_ = T
    WA = slice(gen.WS_WA // 2, (gen.WS_WA + 32 * gen.WA_SZ) // 2); war = R.wa_pack(inp, gen.Opt.zero_pad); wa0 = war.copy()
    for b in wg:
        if b < 192: wa0[:, 3 * b:3 * b + 3] = 0x7FC1
    wsb[WA] = wa0.reshape(-1)
    cv = wsb[C].reshape(128, 152 * 4, 128); cv[:, 512 + 24 * (h >> 3) + 16 + (h & 7)] = 0x7FC1
    db[::2] = 8; db[2 * h] = 0
    wsb[gen.WS_FL // 2:(gen.WS_FL + gen.FL_SZ) // 2].view(np.uint32)[:] = 3
    xb = wsb[gen.WS_X // 2:(gen.WS_X + 256 * gen.X_WG) // 2].reshape(256, 3, 4, 3, 64, 8)
    for j in js: xb[32 * j + h] = R.bf16(rng.standard_normal((3, 4, 3, 64, 8)))
    def region(off):
        for nm, lo in (("x", gen.WS_X), ("fl", gen.WS_FL), ("wa", gen.WS_WA), ("wt", gen.WS_WT), ("hl", gen.WS_CTX + gen.CTX_SZ), ("ctx", gen.WS_CTX), ("kv", 0)):
            if off >= lo:
                if nm == "ctx": return "oa" if ((off - lo) % gen.CTX_RB) >= 128 * 1024 else ("cs" if (off - lo) // gen.CTX_RB < 64 else "cl")
                return nm
    def hook(w, i, buf, offs, vals):
        g = w.wg; g.closed = getattr(g, "closed", set()); g.nsig = getattr(g, "nsig", 0); cover = None; waves = g.waves
        if buf == "ws" and "sc1" not in i.mods: e.w(i, "ws store without sc1")
        if buf == "dbg": g.nsig += 1; cover = ["wa", "fl"] if g.nsig == 1 else ["wt"]; waves = waves if g.nsig == 1 else [w]
        elif buf == "ws" and region(offs[0]) == "fl":
            if vals[0] == 0: return
            if offs[0] >= gen.WS_FL + 32768 or offs[0] % 128: cover = ["wt"] if offs[0] >= gen.WS_FL + 5 * 32768 else [("cs", "cl", "x")[int(vals[0]) - 1]]; waves = [w]
            else: cover = {1: ["kv"], 2: ["hl"], 3: ["oa"]}[int(vals[0])]
        elif buf == "ws":
            if (region(offs[0]), w.wid) in g.closed and not w.s[gen.sRedo.i]: e.w(i, "store after its signal")
            return
        else: return
        for v in waves:
            for c in cover: g.closed.add((c, v.wid))
            for q in v.vmq:
                if q[0] == "st" and q[2] and q[2][0] == "ws" and region(q[2][1]) in cover: e.w(i, f"SIGNAL before store of line {q[2][3]} (wave {v.wid}) was waited for")
        sigs.append((g.id, w.wid, cover))
    sigs = []; e.on_store = hook
    t = time.time(); wgs = e.launch(gen.NAME + "_kernel", wg + [256], 163840, ptrs + [po, pd, pw]); print("emu time", time.time() - t)
    for g in (wgs[0], wgs[7]): print("wg", g.id, "cycles", g.waves[0].t, g.waves[0].marks, "ninst", g.waves[0].ninst)
    print("code probes (line: reach)", e.code_reach)
    print("signals of first wg:", [c for g_, w_, c in sigs if g_ == wg[0]])
    K, V = R.kv_unpack(wsb[h * (gen.HEADSZ + gen.Opt.hskew) // 2:][:gen.HEADSZ // 2]); Kr, Vr = R.kv_ref(inp, h)
    print("K rel", R.rel(K, Kr), "V rel", R.rel(V, Vr))
    X = R.ctx_unpack(wsb[C])
    cr = R.ctx_ref(inp, h); c = X[:, 128 * h:128 * h + 128]
    print("ctx rel", R.rel(c, cr), [round(R.rel(c[128 * t:128 * t + 128], cr[128 * t:128 * t + 128]), 4) for t in range(16)])
    print("oA rel", R.rel(X[:, 4096 + 18 * h:4096 + 18 * h + 18], R.oa_ref(inp, h)))
    print("untouched elsewhere:", bool((X[:, ~mine] == X0[:, ~mine]).all()), "WT ok", bool((wsb[T] == wr.reshape(-1)).all()), "dbg", db[2 * h], "WA ok", bool((wsb[WA] == war.reshape(-1)).all()))
    o = R.f32(e.mem.find(po)[1].view(np.uint16)).reshape(2048, 576)
    sg = h >> 3; sl = np.zeros(4672, bool); sl[1024 * sg:1024 * sg + 1024] = True; sl[4096 + 144 * sg:4096 + 144 * sg + 144] = True
    part = X[:, sl] @ np.concatenate([R.f32(inp["B_w_o"]), R.f32(inp["A_wo"])], 0)[sl]
    ref = np.full((2048, 576), np.nan, np.float32); es = []
    e8 = np.arange(8)
    for j in js:
        T = 15 - j if h & 4 else j
        for w in range(4):
            for cb in range(9):
                rows = (128 * np.where(e8 >> 2, 15 - j, j)[None] + 16 * ((h & 4) + w) + R.L15[:, None]); cols = 16 * (8 * (cb >> 1) + 2 * (h & 3) + (cb & 1) if cb < 8 else 32 + (h & 3)) + 4 * R.G[:, None] + (e8 & 3)[None]
                own = cb >> 1 if cb < 8 else w; f = cb & 1 if cb < 8 else 2
                if own == sg: ref[rows, cols] = part[rows, cols] + R.f32(xb[32 * j + h, :, w, f]).sum(0)
                else:
                    v = (own - sg) & 3
                    es.append(R.rel(R.f32(xb[32 * j + ((h + 8 * v) & 31), 3 - v, w, f]), part[rows, cols]))
    m = ~np.isnan(o); print("out written", m.sum(), "same set", (m == ~np.isnan(ref)).all(), "rel", R.rel(o[m], ref[m]), "sent max rel", max(es), len(es),
                            "x written", (xb != 0x7FC1).any(-1).any(-1).sum())
    cs = sorted(e.conf.items(), key=lambda x: -x[1]); print("bank conflicts:", len(cs), [(k[1][:28], v) for k, v in cs[:40:4]])
    return (not e.warn and R.rel(K, Kr) < 1e-3 and R.rel(V, Vr) < 1e-3 and R.rel(c, cr) < 3e-3 and R.rel(o[m], ref[m]) < 3e-3 and max(es) < 3e-3 and (m == ~np.isnan(ref)).all()
            and R.rel(X[:, 4096 + 18 * h:4096 + 18 * h + 18], R.oa_ref(inp, h)) < 4e-3 and (wsb[T_] == wr.reshape(-1)).all() and (wsb[WA] == war.reshape(-1)).all())
if __name__ == "__main__":
    main(h=int(sys.argv[1]) if len(sys.argv) > 1 else 5, scale_q=float(sys.argv[2]) if len(sys.argv) > 2 else 1.0)
```

```python
import numpy as np
def bf16(x):
    u = np.asarray(x, np.float32).view(np.uint32).astype(np.uint64)
    return (((u + 0x7FFF + ((u >> 16) & 1)) >> 16) & 0xFFFF).astype(np.uint16)
def f32(u): return (u.astype(np.uint32) << 16).view(np.float32)
def rb(x): return f32(bf16(x))
def make_inputs(seed=0, scale_q=1.0):
    r = np.random.default_rng(seed); n = lambda *s: rb(r.standard_normal(s).astype(np.float32))
    d = dict(A_x=n(2048, 576) * 0.05, A_wqkv=n(576, 1728) * 1.6, A_wo=n(576, 576) * 0.05, B_x=n(2048, 576) * 0.05,
             B_c_kv=n(2048, 512) * 1.6, B_w_q=n(576, 4096) * 6.4 * 576 ** -0.5 * scale_q, B_w_uk=n(512, 4096) * 6.4 * 512 ** -0.5,
             B_w_uv=n(512, 4096) * 1.6 * 512 ** -0.5, B_w_o=n(4096, 576) * 1.6 * 4096 ** -0.5, gate_w=n(576) * 0.8)
    return {k: bf16(v) for k, v in d.items()}
G = np.arange(64) >> 4; L15 = np.arange(64) & 15; I8 = np.arange(8)
PERM = 16 * (I8[None, :] >> 2) + 4 * G[:, None] + (I8[None, :] & 3)
def kv_ref(inp, h):
    c = f32(inp["B_c_kv"]); K = rb((c @ f32(inp["B_w_uk"])[:, 128 * h:128 * h + 128]) * np.float32(128 ** -0.5 * 1.4426950408889634)); V = rb(c @ f32(inp["B_w_uv"])[:, 128 * h:128 * h + 128])
    return K, V
def kv_unpack(buf):
    b = f32(buf).reshape(33, 32, 64, 8); K = np.zeros((2048, 128), np.float32); V = K.copy()
    for n in range(32):
        for kb in range(4):
            for ks in range(4): K[(64 * n + 16 * kb + L15)[:, None], 32 * ks + PERM] = b[n, 4 * kb + ks]
        for db in range(8):
            for ks in range(2): V[64 * n + 32 * ks + PERM, (16 * db + L15)[:, None]] = b[n + 1, 16 + 2 * db + ks]
    return K, V
def kidx(ks, weights=False):
    if ks < 128: return 32 * ks + PERM
    sg, ka = divmod(ks - 128, 6); chi = 4 * (ka & 3) + G[:, None] + 0 * I8[None, :]; i = I8[None, :] + 0 * chi
    if ka < 4: return 4096 + 18 * (8 * sg + (chi >> 1)) + 8 * (chi & 1) + i
    if not weights: return np.where(i < 2, 4096 + 18 * (8 * sg + chi) + 16 + i, 4672)
    return np.where(i & 2, 4672, 4096 + 18 * (8 * sg + 2 * G[:, None] + (i >> 2)) + 16 + (i & 1))
def ctx_unpack(buf):
    b = f32(buf).reshape(128, 152, 64, 8); X = np.zeros((2048, 4673), np.float32)
    for ks in range(152):
        k = kidx(ks)
        X[(16 * np.arange(128)[:, None, None] + L15[None, :, None]), k[None]] = b[:, ks]
    return X[:, :4672]
def ctx_pack(X):
    X = np.concatenate([X, np.zeros((2048, 1), np.float32)], 1)
    b = np.zeros((128, 152, 64, 8), np.float32)
    for ks in range(152): b[:, ks] = X[(16 * np.arange(128)[:, None, None] + L15[None, :, None]), kidx(ks)[None]]
    return bf16(b).reshape(-1)
WT_CB = {}
def wt_pack(inp):
    W = np.concatenate([inp["B_w_o"], inp["A_wo"], np.zeros((1, 576), np.uint16)], 0); b = np.zeros((152, 36, 64, 8), np.uint16)
    for ks in range(152):
        sg = ks >> 5 if ks < 128 else (ks - 128) // 6
        cb = np.array([[8 * ((sg + 1 + (u >> 1)) & 3) + 2 * cg + (u & 1) if u < 6 else (32 + cg if u == 6 else 8 * sg + 2 * cg + u - 7) for u in range(9)] for cg in range(4)]).reshape(-1)
        b[ks] = W[kidx(ks, True)[None], (16 * cb[:, None, None] + L15[None, :, None])]; WT_CB[ks] = cb
    return b
def gate(inp):
    gl = rb(f32(inp["A_x"]) @ f32(inp["gate_w"])); return 1 / (1 + np.exp(-gl.astype(np.float64)))
def ctx_ref(inp, h):
    x = f32(inp["A_x"]); g = gate(inp); K, V = kv_ref(inp, h)
    q = rb(x @ f32(inp["B_w_q"])[:, 128 * h:128 * h + 128])
    s = (q @ K.T).astype(np.float64); s[np.triu_indices(2048, 1)] = -1e30
    p = np.exp2(s - s.max(1, keepdims=True))
    return ((p @ V) / p.sum(1, keepdims=True) * (1 - g)[:, None]).astype(np.float32)
def oa_ref(inp, h):
    x = f32(inp["A_x"]); g = gate(inp); W = f32(inp["A_wqkv"])
    q, k, v = [rb(x @ W[:, 576 * t + 18 * h:576 * t + 18 * h + 18]) for t in range(3)]
    idx = np.arange(2048)[:, None] - 2 * np.arange(8)[None, :]; m = idx >= 0; idc = np.where(m, idx, 0)
    lg = np.where(m, np.einsum("sd,swd->sw", q, k[idc]) * 18 ** -0.5, -1e9)
    p = np.exp(lg - lg.max(1, keepdims=True)); p = rb(p / p.sum(1, keepdims=True))
    return (np.einsum("sw,swd->sd", p, v[idc]) * g[:, None]).astype(np.float32)
def rel(a, b): return float(np.linalg.norm(a - b) / np.linalg.norm(b))
def wa_pack(inp, zero=True):
    W = np.concatenate([inp["A_wqkv"].reshape(-1), np.zeros(8, np.uint16)]); out = np.zeros((32, 576, 8, 8), np.uint16)
    k = np.arange(576); f = ((k >> 1) & 1) | (((k >> 3) & 1) << 1)
    for h in range(32):
        rows = np.zeros((576, 16, 4), np.uint16)
        for gam in range(15):
            rows[:, gam] = W[(k * 1728 + (576, 1152, 0)[gam // 5] + 18 * h + 4 * (gam % 5))[:, None] + np.arange(4)]
        rows[:, 15, 0] = inp["gate_w"]
        if zero: rows[:, [4, 9, 14], 2:] = 0
        rows = rows.reshape(576, 8, 8)
        for c in range(8): out[h, k, c ^ (f << 1)] = rows[:, c]
    return out
```

```python
import sys, gen
for tag, o in eval(sys.argv[1]).items():
    old = {k: getattr(gen.Opt, k) for k in o}
    for k, v in o.items(): setattr(gen.Opt, k, v)
    open(f"var/{tag}.s", "w").write(gen.generate())
    gen.check_probes(f"var/{tag}.s")
    if "-n" not in sys.argv:
        import emutest, io, contextlib
        b = io.StringIO()
        with contextlib.redirect_stdout(b): ok = emutest.main(h=6)
        print(tag, "OK" if ok else "FAILED\n" + b.getvalue()[:1500])
    for k, v in old.items(): setattr(gen.Opt, k, v)
print([f"cdna_kernels/var/{t}.s" for t in eval(sys.argv[1])])
```
